```python
import torch

def _softmax(x, axis=-1):
    return torch.softmax(x, dim=axis)

def _gelu(x):
    return torch.nn.functional.gelu(x, approximate='tanh')

def _silu(x):
    return torch.nn.functional.silu(x)

def _sigmoid(x):
    return torch.sigmoid(x)

def _layernorm(x, axis=-1, eps=1e-05):
    m = x.mean(dim=axis, keepdim=True)
    v = x.var(dim=axis, keepdim=True, unbiased=False)
    return (x - m) / torch.sqrt(v + eps)

def _scatter_add(tgt, idx, src, axis=0):
    return tgt.clone().index_add_(axis, idx, src)

def _segment_sum(src, seg, n):
    out = torch.zeros((n,) + src.shape[1:], dtype=src.dtype)
    return out.index_add_(0, seg, src)

def _pad(x, pw):
    flat = tuple((v for pair in reversed(pw) for v in pair))
    return torch.nn.functional.pad(x, flat)
kernel_name = 'recurrent_scan__linear_kernel_hedgehog__mixer_gmlp__prompt'

def setup_inputs():

    _w = lambda a: (lambda t: t.to(torch.bfloat16) if t.is_floating_point() else t)(torch.as_tensor(a))

    def _A_setup():
        B, S, D, H = (1, 2048, 512, 32)
        Dh = D // H
        return {'x': _w((lambda *s: torch.randn(*s, dtype=torch.bfloat16) * 0.05)(B, S, D)), 'wqkv': _w((lambda *s: torch.randn(*s, dtype=torch.bfloat16) * 0.2)(D, 3 * D)), 'w_phi': _w((lambda *s: torch.randn(*s, dtype=torch.bfloat16) * 0.2)(H, Dh, Dh) * Dh ** (-0.5)), 'wo': _w((lambda *s: torch.randn(*s, dtype=torch.bfloat16) * 0.05)(D, D))}
    _A_in = _A_setup()

    def _B_setup():
        B, S, D, F = (1, 2048, 512, 1376)
        Fh = F // 2
        return {'x': _w((lambda *s: torch.randn(*s, dtype=torch.bfloat16) * 0.05)(B, S, D)), 'w_in': _w((lambda *s: torch.randn(*s, dtype=torch.bfloat16) * 0.4)(D, 2 * Fh)), 'w_sp': _w(0.01 * (lambda *s: torch.randn(*s, dtype=torch.bfloat16) * 0.4)(S, S)), 'b_sp': _w(1.0 + 0.01 * (lambda *s: torch.randn(*s, dtype=torch.bfloat16) * 0.05)(S)), 'w_out': _w((lambda *s: torch.randn(*s, dtype=torch.bfloat16) * 0.05)(Fh, D))}
    _B_in = _B_setup()
    return {'A_x': _A_in['x'], 'A_wqkv': _A_in['wqkv'], 'A_w_phi': _A_in['w_phi'], 'A_wo': _A_in['wo'], 'B_x': _B_in['x'], 'B_w_in': _B_in['w_in'], 'B_w_sp': _B_in['w_sp'], 'B_b_sp': _B_in['b_sp'], 'B_w_out': _B_in['w_out']}

def reference(A_x, A_wqkv, A_w_phi, A_wo, B_x, B_w_in, B_w_sp, B_b_sp, B_w_out):

    def _A_ref(x, wqkv, w_phi, wo):
        B, S, D = x.shape
        H = 32
        Dh = D // H
        qkv = (lambda x, *d: x.permute(*d))((x @ wqkv).reshape(B, S, 3, H, Dh), 2, 0, 3, 1, 4)
        q, k, v = (qkv[0], qkv[1], qkv[2])
        pq = torch.einsum('bhsd,hdf->bhsf', q, w_phi)
        pk = torch.einsum('bhsd,hdf->bhsf', k, w_phi)
        phi_q = torch.concatenate([_softmax(pq, axis=-1), _softmax(-pq, axis=-1)], axis=-1)
        phi_k = torch.concatenate([_softmax(pk, axis=-1), _softmax(-pk, axis=-1)], axis=-1)
        kv = torch.einsum('bhsf,bhsd->bhfd', phi_k, v)
        z = torch.einsum('bhsf->bhf', phi_k)
        num = torch.einsum('bhqf,bhfd->bhqd', phi_q, kv)
        den = torch.einsum('bhqf,bhf->bhq', phi_q, z)[..., None] + 1e-06
        o = num / den
        return (lambda x, *d: x.permute(*d))(o, 0, 2, 1, 3).reshape(B, S, D) @ wo

    def _B_ref(x, w_in, w_sp, b_sp, w_out):
        B, S, D = x.shape
        F = w_in.shape[-1]
        Fh = F // 2
        z = _gelu(torch.einsum('bsd,df->bsf', x, w_in))
        z1 = z[..., :Fh].clone()
        z2 = _layernorm(z[..., Fh:], axis=-1)
        g = torch.einsum('ts,bsf->btf', w_sp, z2) + b_sp[None, :, None]
        return torch.einsum('bsf,fd->bsd', z1 * g, w_out)
    x = A_x
    xn = _layernorm(x, axis=-1)
    s = _A_ref(xn, A_wqkv, A_w_phi, A_wo)
    g = _silu(_B_ref(xn, B_w_in, B_w_sp, B_b_sp, B_w_out))
    return x + s * g
```

```python
import re


def R(p, n, c=1):
    return f'{p}{n}' if c == 1 else f'{p}[{n}:{n + c - 1}]'


def v(n, c=1): return R('v', n, c)
def a(n, c=1): return R('a', n, c)
def s(n, c=1): return R('s', n, c)


class KB:
    def __init__(self):
        self.ins = []
        self.vmn = 0
        self.vmdone = 0
        self.lgn = 0
        self.lgdone = 0
        self.nlabel = 0

    def I(self, t):
        for ln in t.split('\n'):
            ln = ln.strip()
            if ln:
                self.ins.append(ln)

    __call__ = I

    def label(self, base='L'):
        self.nlabel += 1
        return f'{base}_{self.nlabel}'

    def vm(self, t):
        self.I(t)
        self.vmn += 1
        return self.vmn

    def ds(self, t):
        self.I(t)
        self.lgn += 1
        return self.lgn

    def wait(self, vm=None, lg=None):
        parts = []
        if vm is not None and vm > self.vmdone:
            n = min(self.vmn - vm, 63)
            parts.append(f'vmcnt({n})')
            self.vmdone = max(self.vmdone, self.vmn - n)
        if lg is not None and lg > self.lgdone:
            n = min(self.lgn - lg, 15)
            parts.append(f'lgkmcnt({n})')
            self.lgdone = max(self.lgdone, self.lgn - n)
        if parts:
            self.I('s_waitcnt ' + ' '.join(parts))

    def force_vm(self, n0):
        n = min(self.vmn - n0, 63)
        self.I(f's_waitcnt vmcnt({n})')
        self.vmdone = max(self.vmdone, self.vmn - n)

    def wait_vm0(self):
        self.I('s_waitcnt vmcnt(0)')
        self.vmdone = self.vmn

    def wait_lg0(self):
        self.I('s_waitcnt lgkmcnt(0)')
        self.lgdone = self.lgn

    def nop(self, n):
        while n > 0:
            k = min(n, 16)
            self.I(f's_nop {k - 1}')
            n -= k

    def text(self):
        out = []
        for ln in self.ins:
            if ln.endswith(':') or ln.startswith('.') or ln.startswith(';'):
                out.append(ln)
            else:
                out.append('    ' + ln)
        return '\n'.join(out) + '\n'


def weave(kb, main, fill, per=None):
    n = len(main)
    m = len(fill)
    j = 0
    for i, op in enumerate(main):
        op()
        tgt = (m * (i + 1) + n - 1) // n if per is None else min(m, j + per)
        while j < tgt:
            fill[j]()
            j += 1
    while j < m:
        fill[j]()
        j += 1


_reg = re.compile(r'(?<![\w.])(-?\|?)([vas])(?:(\d+)|\[(\d+):(\d+)\])')


def regs_of(op):
    out = set()
    for m in _reg.finditer(op):
        p = m.group(2)
        if m.group(3) is not None:
            out.add((p, int(m.group(3))))
        else:
            for k in range(int(m.group(4)), int(m.group(5)) + 1):
                out.add((p, k))
    if 'vcc' in op:
        out.add(('s', 'vcc'))
    if re.search(r'\bm0\b', op):
        out.add(('s', 'm0'))
    if re.search(r'\bexec\b', op):
        out.add(('s', 'exec'))
    return out


TRANS = ('v_exp_f32', 'v_log_f32', 'v_rcp_f32', 'v_rsq_f32', 'v_sqrt_f32', 'v_sin_f32', 'v_cos_f32')


def split_ops(rest):
    ops = []
    depth = 0
    cur = ''
    for ch in rest:
        if ch == '[':
            depth += 1
        if ch == ']':
            depth -= 1
        if ch == ',' and depth == 0:
            ops.append(cur.strip())
            cur = ''
        else:
            cur += ch
    if cur.strip():
        ops.append(cur.strip())
    return ops


def parse(ln):
    ln = ln.split(';')[0].strip()
    if not ln or ln.endswith(':') or ln.startswith('.'):
        return None
    parts = ln.split(None, 1)
    mn = parts[0]
    ops = split_ops(parts[1]) if len(parts) > 1 else []
    d = dict(mn=mn, txt=ln, w=set(), r=set(), cls='other', srcc=set(), data=set())
    base = mn.replace('_e32', '').replace('_e64', '').replace('_dpp', '')
    if mn.startswith('v_mfma'):
        d['cls'] = 'mfma'
        d['w'] = regs_of(ops[0])
        d['ab'] = regs_of(ops[1]) | regs_of(ops[2])
        d['srcc'] = regs_of(ops[3])
        d['r'] = d['ab'] | d['srcc']
    elif mn.startswith('v_cmp'):
        d['cls'] = 'valu'
        d['w'] = regs_of(ops[0])
        for o in ops[1:]:
            d['r'] |= regs_of(o)
    elif mn.startswith('v_permlane'):
        d['cls'] = 'permlane'
        d['w'] = regs_of(ops[0]) | regs_of(ops[1])
        d['r'] = set(d['w'])
    elif mn.startswith('v_readfirstlane') or mn.startswith('v_readlane'):
        d['cls'] = 'readlane'
        d['w'] = regs_of(ops[0])
        d['r'] = regs_of(ops[1])
    elif mn.startswith('v_'):
        d['cls'] = 'valu'
        d['w'] = regs_of(ops[0])
        for o in ops[1:]:
            d['r'] |= regs_of(o.split(' ')[0])
        if base in ('v_fmac_f32', 'v_dot2c_f32_bf16'):
            d['r'] |= d['w']
        if base in TRANS:
            d['trans'] = True
        if base.startswith('v_dot2'):
            d['dot'] = True
        if 'dpp' in mn or 'row_' in ln or 'quad_perm' in ln:
            d['dpp'] = True
        if base.startswith('v_cndmask') and len(ops) == 3:
            d['r'].add(('s', 'vcc'))
    elif mn.startswith('ds_'):
        d['cls'] = 'ds'
        if 'read' in mn:
            d['w'] = regs_of(ops[0])
            d['r'] = regs_of(ops[1].split(' ')[0])
        else:
            for o in ops:
                d['r'] |= regs_of(o.split(' ')[0])
    elif mn.startswith('buffer_') or mn.startswith('global_'):
        d['cls'] = 'vmem'
        lds = ln.endswith(' lds') or ' lds ' in ln or '_lds_' in mn
        if 'load' in mn and not lds:
            d['w'] = regs_of(ops[0])
            for o in ops[1:]:
                d['r'] |= regs_of(o.split(' ')[0])
            if 'd16' in mn:
                d['r'] |= d['w']
        else:
            for o in ops:
                d['r'] |= regs_of(o.split(' ')[0])
            if lds:
                d['r'].add(('s', 'm0'))
                d['ldsdma'] = True
            if 'store' in mn and ('x4' in mn or 'x3' in mn):
                d['data'] = regs_of(ops[0]) if mn.startswith('buffer_') else regs_of(ops[1])
    elif mn.startswith('s_'):
        d['cls'] = 'salu'
        if mn == 's_nop':
            d['n'] = int(ops[0]) + 1
        elif mn.startswith('s_cmp') or mn.startswith('s_cbranch') or mn in ('s_waitcnt', 's_barrier', 's_branch', 's_endpgm', 's_sleep', 's_setprio') or mn.startswith('s_bitcmp'):
            for o in ops:
                d['r'] |= regs_of(o)
        else:
            if ops:
                d['w'] = regs_of(ops[0])
            for o in ops[1:]:
                d['r'] |= regs_of(o)
    return d


def check_hazards(lines, verbose=True):
    ins = [p for p in (parse(l) for l in lines) if p]
    pos = []
    t = 0
    for i in ins:
        pos.append(t)
        t += i.get('n', 1)
    errs = []

    def isv(r):
        return r[0] in 'va'

    for j, c in enumerate(ins):
        k = j - 1
        while k >= 0:
            p = ins[k]
            dist = pos[j] - pos[k] - p.get('n', 1)
            if dist >= 20:
                break
            need = 0
            why = ''
            pv = p['cls'] in ('valu', 'permlane', 'readlane')
            cv = c['cls'] in ('valu', 'permlane', 'readlane')
            raw = p['w'] & c['r']
            rawv = {r for r in raw if isv(r)}
            raws = {r for r in raw if not isv(r)}
            if pv and c['cls'] == 'mfma' and rawv:
                need, why = (3 if p.get('dot') else 2), 'valu->mfma'
            if p['cls'] == 'mfma':
                if c['cls'] == 'mfma':
                    if p['w'] & c['ab']:
                        need, why = 12, 'mfma->mfma A/B'
                    elif p['w'] & c['srcc'] and p['w'] != c['srcc']:
                        need, why = 10, 'mfma->mfma C overlap'
                    elif (p['w'] & c['w']) and not (p['w'] & c['srcc']):
                        need, why = 10, 'mfma->mfma WAW'
                elif (cv or c['cls'] in ('ds', 'vmem')) and (p['w'] & (c['r'] | c['w'])):
                    need, why = 12, 'mfma D -> use'
                elif cv and (p['srcc'] & c['w']):
                    need, why = 7, 'mfma srcC WAR'
            if p.get('trans') and cv and not c.get('trans') and rawv:
                need, why = max(need, 1), 'trans->valu'
            if p.get('trans') and c['cls'] in ('ds', 'vmem') and rawv:
                need, why = max(need, 1), 'trans->mem'
            if p.get('dot') and (cv or c['cls'] in ('ds', 'vmem')) and (p['w'] & (c['r'] | c['w'])):
                if not (c.get('dot') and c['mn'] == p['mn'] and not (p['w'] & (c['r'] - c['w']))):
                    need, why = max(need, 3), 'dot->use'
            if pv and c['cls'] == 'permlane' and rawv:
                need, why = max(need, 2), 'valu->permlane'
            if pv and c['cls'] == 'readlane' and rawv:
                need, why = max(need, 1), 'valu->readlane'
            if pv and c.get('dpp') and rawv:
                need, why = max(need, 2), 'valu->dpp'
            if pv and cv and raws:
                need, why = max(need, 2), 'valu sgpr->valu'
            if pv and c['cls'] == 'vmem' and raws:
                need, why = max(need, 5), 'valu sgpr->vmem'
            if pv and c['cls'] == 'salu' and raws:
                need, why = max(need, 1), 'valu sgpr->salu (pad)'
            if p['cls'] == 'salu' and c.get('ldsdma') and ('s', 'm0') in p['w']:
                need, why = max(need, 1), 'm0->ldsdma'
            if p['data'] and cv and (p['data'] & c['w']):
                need, why = max(need, 2), 'store data WAR'
            if p['data'] and c['cls'] in ('ds', 'vmem') and (p['data'] & c['w']):
                need, why = max(need, 1), 'store data WAR(load)'
            if need > dist:
                errs.append(f'{why}: need {need} have {dist}:\n   {p["txt"]}\n   {c["txt"]}   [#{j}]')
            k -= 1
    if verbose:
        for e in errs[:40]:
            print('HAZARD', e)
        print(f'hazard check: {len(ins)} instrs, {len(errs)} findings')
    return errs
```

```python
import sys, math, struct
from kb import KB, v, a, s, weave, check_hazards

KNAME = 'recurrent_scan__linear_kernel_hedgehog__mixer_gmlp__prompt_kernel'


def f32(x):
    return '0x%08x' % struct.unpack('<I', struct.pack('<f', x))[0]


WS_EPOCH = 0
WS_FZ = 0x1000
WS_FZ2 = 0x2000
WS_FY = 0x3000
WS_FKV = 0x4000
WS_FO = 0x5000
WS_FH = 0x6000
WS_KV = 0x10000
WS_E2 = 0x40000
WS_Z2N = 0x100000
WS_Z1 = 0x400000
WS_H = 0x700000
WS_O = 0xA00000
WS_SIZE = 0xC00000
WS_DBG = 0x1000000
BIG = 0x40000000
TAGK = 0x9E3779B1

EX = 131072

sX, sQ, sI, sS, sW, sO, sWO, sWU, sP, sB, sB2 = 4, 8, 12, 16, 20, 24, 28, 32, 36, 40, 44
sWave, sMi, sA, sIsX, sRot, sTag, sRw, sOnes = 48, 49, 50, 51, 52, 53, 54, 55
sXb, sAb, sBb, sBstr, sSlot, sHasZ2, sMask0, sTg = 56, 57, 58, 59, 60, 61, 62, 63
sZ1A, sZ1B, sM2, sN2 = 64, 65, 66, 67
sT0, sT1, sT2, sT3, sT4, sT5, sT6, sT7 = 68, 69, 70, 71, 72, 73, 74, 75
sRdy = 76
sEx = 78
sCnt = 80
sSb = 81
sZb = 82
sTS = 84

vLane = 1
vT = 2
vX = 16
vXR = 20
vAo = 24
vBo = 26
vTA = 30
vTC = 32
vTB = 34
vTCB = 38
vSum, vSq, vC0, vC1 = 40, 41, 42, 43
vK0, vK1, vSig, vR = 44, 46, 48, 50
vM = 52
vEp = 56
vH = 57
accA = 64
accB = 96
wfA = 96
xt = 160
wfB = 160
cf = 192
tmp = 208
vRL = 58
vBig = 60
vL0 = 61
vPhi = 224
aP = 208
aW = 96
E2_STAGE = 5
SPIN = 20000
sPubF = 83
vZ, vF, vFd, vBs, vY, vL16, vOut = 24, 25, 26, 28, 30, 32, 33
vXE = 34
vU = 16
vTU, vTO = 38, 40
vZ1 = 44
ZD = 6
zb = 64
wl = 136
sZ0, sFb, sTg2, sFg, sKf, sYf, sHb = 56, 59, 60, 61, 62, 64, 65
sKh, sTb, sNc, sOb = 56, 57, 58, 59
PUB_AT = 8
O_AT = (12, 14, 17, 18, 20, 21, 30)
Z1_AT = (20, 24)


class Gen:
    def __init__(self, stop=None, dbg=False, ts=False, p2map='8x4'):
        self.k = KB()
        self.stop = stop
        self.dbg = dbg
        self.ts = ts
        self.p2map = p2map
        self.nts = 0
        self.tail = []

    def stamp(self):
        if not self.ts:
            return
        r = sTS + self.nts
        assert r < 100
        self.k(f's_memrealtime s[100:101]')
        self.k.wait_lg0()
        self.k(f's_mov_b32 s{r}, s100')
        self.nts += 1

    def dump(self, regs, fin=True):
        k = self.k
        k.nop(16)
        k.wait_vm0()
        k.wait_lg0()
        n = len(regs)
        k(f's_lshl_b32 s{sT0}, s2, 2\ns_add_u32 s{sT0}, s{sT0}, s{sWave}\ns_mul_i32 s{sT0}, s{sT0}, {n * 256}')
        k(f's_add_u32 s{sT0}, s{sT0}, {WS_DBG}')
        k(f's_mov_b32 s{sW + 2}, 0x10000000')
        k(f'v_lshlrev_b32 v0, 2, v{vLane}')
        for i, (p, r) in enumerate(regs):
            k(f'buffer_store_dword {p}{r}, v0, {s(sW, 4)}, s{sT0} offen')
            k(f's_add_u32 s{sT0}, s{sT0}, 256')
        k.wait_vm0()
        if fin:
            k('s_endpgm')

    def srd(self, d, nbytes):
        self.k(f's_mov_b32 s{d + 2}, {nbytes}\ns_mov_b32 s{d + 3}, 0x00020000')

    def swap_sum(self, A, B, T):
        k = self.k
        k.nop(2)
        k(f'v_permlane32_swap_b32 v{A}, v{B}')
        k(f'v_add_f32 v{B}, v{A}, v{B}')
        k(f'v_mov_b32 v{A}, v{B}')
        k.nop(2)
        k(f'v_permlane32_swap_b32 v{A}, v{B}')

    def setup(self):
        k = self.k
        k('s_cmp_ge_u32 s2, 256\ns_cbranch_scc1 L_end')
        self.stamp()
        for d, off in ((sX, 0), (sI, 40), (sQ, 8), (sW, 88), (sS, 48), (sO, 72), (sWO, 24), (sWU, 64), (sP, 16), (sB, 56)):
            k(f's_load_dwordx2 {s(d, 2)}, s[0:1], {off}')
        k(f'v_and_b32 v{vLane}, 63, v0\nv_lshrrev_b32 v2, 6, v0')
        k(f's_lshr_b32 s{sT0}, s2, 3')
        k(f'v_readfirstlane_b32 s{sWave}, v2')
        k(f's_and_b32 s{sT1}, s2, 1\ns_lshl_b32 s{sT1}, s{sT1}, 3\ns_lshr_b32 s{sT2}, s{sT0}, 2\ns_add_u32 s{sMi}, s{sT1}, s{sT2}')
        k(f's_bfe_u32 s{sT1}, s2, 0x20001\ns_lshl_b32 s{sT1}, s{sT1}, 1\ns_bfe_u32 s{sT3}, s{sT0}, 0x10001\ns_add_u32 s{sA}, s{sT1}, s{sT3}')
        k(f's_and_b32 s{sIsX}, s{sT0}, 1\ns_xor_b32 s{sIsX}, s{sIsX}, 1')
        k(f's_and_b32 s{sT3}, s{sT0}, 3\ns_lshl_b32 s{sT3}, s{sT3}, 1\ns_add_u32 s{sRot}, s{sT2}, s{sT3}\ns_and_b32 s{sRot}, s{sRot}, 7')
        if self.p2map == '8x4':
            k(f's_and_b32 s{sT1}, s2, 3\ns_lshl_b32 s{sT1}, s{sT1}, 3\ns_add_u32 s{sM2}, s{sT1}, s{sT2}')
            k(f's_bfe_u32 s{sT1}, s2, 0x10002\ns_lshl_b32 s{sT1}, s{sT1}, 2\ns_and_b32 s{sT3}, s{sT0}, 3\ns_add_u32 s{sN2}, s{sT1}, s{sT3}')
        else:
            k(f's_and_b32 s{sT1}, s2, 7\ns_lshl_b32 s{sT1}, s{sT1}, 2\ns_lshr_b32 s{sT3}, s{sT0}, 3\ns_add_u32 s{sM2}, s{sT1}, s{sT3}')
            k(f's_and_b32 s{sN2}, s{sT0}, 7')
        k(f's_lshl_b32 s{sRw}, s{sWave}, 15\ns_mov_b32 s{sOnes}, 0x3f803f80')
        k(f's_lshl_b32 s{sTg}, s{sMi}, 2\ns_add_u32 s{sTg}, s{sTg}, s{sWave}')
        k(f's_lshl_b32 s{sXb}, s{sTg}, 15')
        k(f's_lshl_b32 s{sT1}, s{sA}, 1')
        k(f's_add_u32 s{sT3}, s{sT1}, 27\ns_add_u32 s{sT4}, s{sT1}, 11\ns_lshl_b32 s{sT5}, s{sA}, 2')
        k(f's_cmp_le_u32 s{sA}, 4\ns_cselect_b32 s{sT4}, s{sT5}, s{sT4}\ns_cselect_b32 s{sHasZ2}, 0, 1')
        k(f's_cmp_eq_u32 s{sIsX}, 1\ns_cselect_b32 s{sT4}, s{sT3}, s{sT4}\ns_cselect_b32 s{sHasZ2}, 1, s{sHasZ2}')
        k(f's_sub_u32 s{sSlot}, s{sT4}, 21\ns_lshr_b32 s{sSlot}, s{sSlot}, 1')
        k(f's_cmp_eq_u32 s{sT4}, 21\ns_cselect_b32 s{sMask0}, 0, 1.0')
        k(f's_mul_i32 s{sT5}, s{sTg}, 44')
        k(f's_lshl_b32 s{sT6}, s{sT4}, 1\ns_add_u32 s{sZ1A}, s{sT5}, s{sT6}\ns_lshl_b32 s{sZ1A}, s{sZ1A}, 10\ns_add_u32 s{sZ1A}, s{sZ1A}, {WS_Z1}')
        k(f's_lshl_b32 s{sAb}, s{sT4}, 6\ns_mul_i32 s{sT6}, s{sWave}, {16 * 2752}\ns_add_u32 s{sAb}, s{sAb}, s{sT6}')
        k(f's_lshl_b32 s{sT6}, s{sA}, 2\ns_add_u32 s{sT6}, s{sT6}, 2\ns_min_u32 s{sT6}, s{sT6}, 20')
        k(f's_lshl_b32 s{sT7}, s{sT6}, 1\ns_add_u32 s{sZ1B}, s{sT5}, s{sT7}\ns_lshl_b32 s{sZ1B}, s{sZ1B}, 10\ns_add_u32 s{sZ1B}, s{sZ1B}, {WS_Z1}')
        k(f's_lshl_b32 s{sT6}, s{sT6}, 6')
        k(f's_cmp_ge_u32 s{sA}, 6\ns_cselect_b32 s{sT6}, {BIG}, s{sT6}\ns_cselect_b32 s{sZ1B}, {BIG}, s{sZ1B}')
        k(f's_lshl_b32 s{sT1}, s{sA}, 7\ns_lshl_b32 s{sT3}, s{sIsX}, 10\ns_add_u32 s{sT3}, s{sT3}, s{sT1}')
        k(f's_add_u32 s{sT1}, s{sT1}, 2048\ns_cmp_eq_u32 s{sIsX}, 1\ns_cselect_b32 s{sT1}, s{sT1}, s{sT6}')
        k(f's_cmp_ge_u32 s{sWave}, 2\ns_cselect_b32 s{sBb}, s{sT1}, s{sT3}')
        k(f's_cselect_b32 s{sT1}, 1, 0\ns_andn2_b32 s{sT1}, s{sT1}, s{sIsX}')
        k(f's_movk_i32 s{sBstr}, 2752\ns_cmp_eq_u32 s{sT1}, 1\ns_cselect_b32 s{sBstr}, s{sBstr}, 3072')
        k(f's_and_b32 s{sT3}, s{sWave}, 1\ns_lshl_b32 s{sT3}, s{sT3}, 5\ns_mul_i32 s{sT3}, s{sT3}, s{sBstr}\ns_add_u32 s{sBb}, s{sBb}, s{sT3}')
        L = vLane
        k(f'v_lshrrev_b32 v2, 3, v{L}')
        k(f'v_lshrrev_b32 v3, 4, v{L}')
        k(f'v_and_b32 v4, 7, v{L}')
        k(f'v_xor_b32 v5, v4, v3\nv_lshlrev_b32 v5, 4, v5')
        k(f'v_lshl_add_u32 v{vX}, v2, 10, v5')
        k(f'v_xor_b32 v6, 64, v{vX}')
        k(f'v_add_u32 v{vX + 1}, {7168}, v6\nv_add_u32 v{vX + 2}, {2 * 7168}, v{vX}\nv_add_u32 v{vX + 3}, {3 * 7168}, v6')
        k(f'v_and_b32 v6, 1, v3\nv_lshlrev_b32 v6, 2, v6\nv_xor_b32 v6, v6, v4\nv_lshlrev_b32 v6, 4, v6')
        k(f'v_mul_u32_u24 v7, 2752, v2\nv_add_u32 v{vAo}, v7, v6\nv_add_u32 v{vAo + 1}, {8 * 2752 - 1024}, v{vAo}')
        k('s_waitcnt lgkmcnt(0)')
        self.srd(sX, 2048 * 1024)
        self.srd(sI, 512 * 2752)
        self.srd(sQ, 512 * 3072)
        self.srd(sW, WS_SIZE)
        self.tokA = {}
        for p in range(4):
            for op in self.dmaA_ops(p):
                op()
        k(f'v_mov_b32 v{vBig}, {BIG}')
        k(f's_lshl_b32 s{sT5}, s{sA}, 2\ns_add_u32 s{sT5}, s{sT5}, s{sWave}\ns_mul_i32 s{sT5}, s{sT5}, 2176\ns_add_u32 s{sT5}, s{sT5}, {WS_KV}')
        k(f's_lshl_b32 s{sT6}, s{sA}, 7\ns_lshl_b32 s{sT7}, s{sWave}, 2\ns_add_u32 s{sT6}, s{sT6}, s{sT7}\ns_add_u32 s{sPubF}, s{sT6}, {WS_FZ}')
        k(f's_cmp_eq_u32 s{sMi}, 0\ns_cselect_b32 s{sT6}, s{sIsX}, 0\ns_cmp_eq_u32 s{sT6}, 1')
        k(f's_cselect_b32 s{sT5}, s{sT5}, {BIG}\ns_cselect_b32 s{sPubF}, s{sPubF}, {BIG}')
        k(f'v_mov_b32 v12, 0\nv_mov_b32 v13, 0\nv_mov_b32 v14, 0\nv_mov_b32 v15, 0\nv_lshlrev_b32 v9, 4, v{L}')
        k(f'v_min_u32 v{vL0}, 1, v{L}\nv_lshlrev_b32 v{vL0}, 30, v{vL0}')
        k(f'v_cmp_gt_u32 vcc, 8, v{L}')
        k.vm(f'buffer_store_dwordx4 v[12:15], v9, {s(sW, 4)}, s{sT5} offen sc1')
        k.vm(f'buffer_store_dwordx4 v[12:15], v9, {s(sW, 4)}, s{sT5} offen offset:1024 sc1')
        k(f'v_cndmask_b32 v10, v{vBig}, v9, vcc')
        k.vm(f'buffer_store_dwordx4 v[12:15], v10, {s(sW, 4)}, s{sT5} offen offset:2048 sc1')
        k(f'v_mov_b32 v8, 0')
        self.tokEp = k.vm(f'buffer_load_dword v{vEp}, v8, {s(sW, 4)}, 0 offen sc1')
        self.srd(sS, 2048 * 4096)
        self.srd(sO, 2048 * 1024)
        self.srd(sWO, 512 * 1024)
        self.srd(sWU, 688 * 1024)
        self.srd(sP, 32 * 512)
        self.srd(sB, 4096)
        k(f's_cmp_eq_u32 s{sT1}, 1')
        k(f's_cselect_b32 s{sB2}, s{sI}, s{sQ}\ns_cselect_b32 s{sB2 + 1}, s{sI + 1}, s{sQ + 1}\ns_cselect_b32 s{sB2 + 2}, s{sI + 2}, s{sQ + 2}')
        k(f's_mov_b32 s{sB2 + 3}, 0x00020000')
        k(f'v_mul_lo_u32 v7, v2, s{sBstr}\nv_add_u32 v{vBo}, v7, v6')
        k(f's_lshl_b32 s{sT3}, s{sBstr}, 3\ns_sub_u32 s{sT3}, s{sT3}, 1024')
        for j in range(1, 4):
            k(f'v_add_u32 v{vBo + j}, s{sT3}, v{vBo + j - 1}')
        k(f'v_lshrrev_b32 v{vH}, 5, v{L}')
        k(f'v_and_b32 v7, 31, v{L}\nv_lshlrev_b32 v8, 7, v7')
        k(f'v_add_u32 v8, s{sRw}, v8\nv_bfe_u32 v9, v{L}, 1, 3\nv_xor_b32 v9, v9, v{vH}\nv_lshlrev_b32 v9, 4, v9')
        for ks in range(4):
            k(f'v_xor_b32 v10, {32 * ks}, v9\nv_add_u32 v{vXR + ks}, v8, v10')
        k(f'v_bfe_u32 v7, v{L}, 2, 2\nv_lshl_add_u32 v8, v{vH}, 3, v7\nv_lshlrev_b32 v8, 7, v8')
        k(f'v_bfe_u32 v9, v{L}, 3, 1\nv_lshl_add_u32 v8, v9, 6, v8\nv_bfe_u32 v9, v{L}, 4, 1\nv_lshl_add_u32 v8, v9, 5, v8')
        k(f'v_and_b32 v9, 3, v{L}\nv_lshl_add_u32 v{vTB}, v9, 3, v8\nv_xor_b32 v{vTB + 1}, 64, v{vTB}')
        k(f'v_add_u32 v{vTB + 2}, 0x10000, v{vTB}\nv_add_u32 v{vTB + 3}, 0x10000, v{vTB + 1}')
        k(f'v_add_u32 v{vTA}, {EX}, v{vTB}\nv_add_u32 v{vTA + 1}, {EX}, v{vTB + 1}')
        k(f's_lshl_b32 s{sT3}, s{sWave}, 11')
        k(f'v_add_u32 v{vTC}, s{sT3}, v{vTA}\nv_add_u32 v{vTC + 1}, s{sT3}, v{vTA + 1}')
        k(f'v_add_u32 v{vTCB}, s{sRw}, v{vTB}\nv_add_u32 v{vTCB + 1}, s{sRw}, v{vTB + 1}')
        for r in (vSum, vSq, vC0, vC1):
            k(f'v_mov_b32 v{r}, 0')
        for op in self.wphi_load_ops():
            op()

    def stage_of(self, p, dst):
        self.k(f's_add_u32 s{dst}, s{sRot}, {p}\ns_and_b32 s{dst}, s{dst}, 7')

    def dmaA_ops(self, p):
        k = self.k
        ops = []

        def o0():
            self.stage_of(p, sT5)
            k(f's_lshl_b32 s{sT6}, s{sT5}, 7\ns_add_u32 s{sT6}, s{sT6}, s{sXb}')
            k(f's_add_u32 m0, s{sRw}, {4096 * p}')
            k(f's_mul_i32 s{sT7}, s{sT5}, {64 * 2752}')
        ops.append(o0)
        for c in range(4):
            ops.append(lambda c=c: k.vm(f'buffer_load_dwordx4 v{vX + c}, {s(sX, 4)}, s{sT6} offen offset:{1024 * c} lds'))

        def o1():
            k(f's_lshl_b32 s{sT5}, s{sWave}, 11\ns_add_u32 m0, s{sT5}, {EX + 8192 * (p & 3)}')
            k(f's_add_u32 s{sT7}, s{sT7}, s{sAb}')
        ops.append(o1)
        ops.append(lambda: k.vm(f'buffer_load_dwordx4 v{vAo}, {s(sI, 4)}, s{sT7} offen lds'))

        def o2():
            self.tokA[p] = k.vm(f'buffer_load_dwordx4 v{vAo + 1}, {s(sI, 4)}, s{sT7} offen offset:1024 lds')
        ops.append(o2)
        return ops

    def dmaB_ops(self, p):
        k = self.k
        ops = []

        def o0():
            self.stage_of(p, sT5)
            k(f's_mul_i32 s{sT6}, s{sT5}, s{sBstr}\ns_lshl_b32 s{sT6}, s{sT6}, 6')
            k(f's_add_u32 m0, s{sRw}, {4096 * p}')
            k(f's_add_u32 s{sT6}, s{sT6}, s{sBb}')
        ops.append(o0)
        for j in range(4):
            def o(j=j):
                self.tokB[p] = k.vm(f'buffer_load_dwordx4 v{vBo + j}, {s(sB2, 4)}, s{sT6} offen offset:{1024 * j} lds')
            ops.append(o)
        return ops

    def readsA_ops(self, p):
        k = self.k
        b = p & 1
        ops = []
        for ks in range(4):
            ops.append(lambda ks=ks: k.ds(f'ds_read_b128 {v(xt + 16 * b + 4 * ks, 4)}, v{vXR + ks} offset:{4096 * p}'))
            for bl in range(2):
                for t in range(2):
                    ops.append(lambda ks=ks, bl=bl, t=t: k.ds(
                        f'ds_read_b64_tr_b16 {v(wfA + 32 * b + 8 * ks + 4 * bl + 2 * t, 2)}, v{vTA + bl} offset:{8192 * (p & 3) + 2048 * ks + 512 * t}'))
        for bl in range(2):
            for t in range(2):
                ops.append(lambda bl=bl, t=t: k.ds(
                    f'ds_read_b64_tr_b16 {v(cf + 8 * b + 4 * bl + 2 * t, 2)}, v{vTC + bl} offset:{8192 * (p & 3) + 512 * t}'))
        for ks in range(4):
            ops.append(lambda ks=ks: k.ds(f'ds_read_b128 {a(16 * p + 4 * ks, 4)}, v{vXR + ks} offset:{4096 * p}'))
        return ops

    def passA(self):
        k = self.k
        self.tokB = {}
        k.wait(vm=self.tokA[0])
        k('s_barrier')
        self.stamp()
        for op in self.readsA_ops(0):
            op()
        for p in range(8):
            b = p & 1
            if p < 7:
                k.wait(vm=self.tokA[p + 1], lg=k.lgn)
                k('s_barrier')
            else:
                k.wait(lg=k.lgn)
            fill = []
            if p + 4 <= 7:
                fill += self.dmaA_ops(p + 4)
            else:
                fill += self.dmaB_ops(2 * (p - 4)) + self.dmaB_ops(2 * (p - 4) + 1)
            if p < 7:
                rd = self.readsA_ops(p + 1)
                fill = rd[:10] + fill + rd[10:]
            main = []
            for ks in range(4):
                for bl in range(2):
                    c = '0' if (p == 0 and ks == 0) else v(accA + 16 * bl, 16)
                    main.append(lambda ks=ks, bl=bl, c=c: k(
                        f'v_mfma_f32_32x32x16_bf16 {v(accA + 16 * bl, 16)}, {v(wfA + 32 * b + 8 * ks + 4 * bl, 4)}, {v(xt + 16 * b + 4 * ks, 4)}, {c}'))
            weave(k, main, fill)
            for i in range(16):
                k(f'v_dot2c_f32_bf16 v{vSum}, s{sOnes}, v{xt + 16 * b + i}')
                k(f'v_dot2c_f32_bf16 v{vSq}, v{xt + 16 * b + i}, v{xt + 16 * b + i}')
                if i < 8:
                    k(f'v_dot2c_f32_bf16 v{vC0 + (i >> 2)}, s{sOnes}, v{cf + 8 * b + i}')

    def rank1_operand(self, c, dst):
        k = self.k
        k(f'v_cvt_pk_bf16_f32 v{dst}, v{c}, v{c}')
        k(f'v_and_b32 v{dst + 1}, 0xffff0000, v{dst}')
        k(f'v_sub_f32 v{dst + 1}, v{c}, v{dst + 1}')
        k(f'v_cvt_pk_bf16_f32 v{dst + 1}, v{dst + 1}, v{dst + 1}')
        k(f'v_mov_b32 v{dst + 2}, 0\nv_mov_b32 v{dst + 3}, 0')

    def gelu(self, acc, n, T):
        k = self.k
        bc = 'op_sel_hi:[1,0,0]'
        G = 8
        for g in range(0, n, G):
            for i in range(0, G, 2):
                k(f'v_pk_mul_f32 {v(T + i, 2)}, {v(acc + g + i, 2)}, {v(acc + g + i, 2)}')
            for i in range(0, G, 2):
                k(f'v_pk_fma_f32 {v(T + i, 2)}, {v(T + i, 2)}, {v(vK1, 2)}, {v(vK0, 2)} {bc}')
            for i in range(0, G, 2):
                k(f'v_pk_mul_f32 {v(T + i, 2)}, {v(T + i, 2)}, {v(acc + g + i, 2)}')
            for i in range(G):
                k(f'v_exp_f32 v{T + i}, v{T + i}')
            for i in range(0, G, 2):
                k(f'v_pk_fma_f32 {v(T + i, 2)}, {v(T + i, 2)}, {v(vSig, 2)}, {v(vSig, 2)} {bc}')
            for i in range(G):
                k(f'v_rcp_f32 v{T + i}, v{T + i}')
            for i in range(0, G, 2):
                k(f'v_pk_mul_f32 {v(acc + g + i, 2)}, {v(T + i, 2)}, {v(acc + g + i, 2)}')

    def z1_store(self, acc, sbase, T):
        k = self.k
        k(f'v_lshlrev_b32 v{vT}, 4, v{vLane}')
        tok = None
        for hb in range(4):
            for i in range(4):
                k(f'v_cvt_pk_bf16_f32 v{T + 4 * hb + i}, v{acc + 8 * hb + 2 * i}, v{acc + 8 * hb + 2 * i + 1}')
            tok = k.vm(f'buffer_store_dwordx4 {v(T + 4 * hb, 4)}, v{vT}, {s(sW, 4)}, s{sbase} offen offset:{1024 * hb} sc1')
        return tok

    def epiA(self):
        k = self.k
        L = vLane
        k(f'v_and_b32 v2, 31, v{L}\nv_lshlrev_b32 v2, 5, v2\nv_add_u32 v2, {EX}, v2')
        k(f's_lshl_b32 s{sT0}, s{sWave}, 3\nv_lshl_add_u32 v3, v{vH}, 2, v2\nv_add_u32 v3, s{sT0}, v3')
        k.ds(f'ds_write_b32 v3, v{vC0}')
        tw = k.ds(f'ds_write_b32 v3, v{vC1} offset:1024')
        self.swap_sum(vSum, vSq, 4)
        k(f'v_mul_f32 v4, {f32(1 / 512)}, v{vSum}')
        k(f'v_mul_f32 v5, v4, v4\nv_mov_b32 v6, {f32(1 / 512)}\nv_fma_f32 v5, v{vSq}, v6, -v5')
        k(f'v_max_f32 v5, 0, v5\nv_add_f32 v5, {f32(1e-5)}, v5')
        k.wait(lg=tw)
        k('s_barrier')
        t = []
        for bl in range(2):
            for j in range(2):
                t.append(k.ds(f'ds_read_b128 {v(tmp + 8 * bl + 4 * j, 4)}, v2 offset:{1024 * bl + 16 * j}'))
        k(f'v_rsq_f32 v{vR}, v5')
        k(f'v_sub_f32 v4, 0, v4')
        k(f'v_mul_f32 v{vSig}, v5, v{vR}')
        K0 = -2 * math.log2(math.e) * math.sqrt(2 / math.pi)
        k(f'v_mul_f32 v{vK0}, {f32(K0)}, v{vR}')
        k(f'v_mul_f32 v6, v{vR}, v{vR}\nv_mul_f32 v6, {f32(0.044715)}, v6\nv_mul_f32 v{vK1}, v6, v{vK0}')
        k(f'v_cvt_pk_bf16_f32 v6, v4, v4\nv_and_b32 v7, 0xffff0000, v6\nv_sub_f32 v7, v4, v7\nv_cvt_pk_bf16_f32 v6, v4, v7')
        k(f'v_cmp_eq_u32 vcc, 0, v{vH}')
        k(f'v_mov_b32 v{vM + 2}, 0\nv_mov_b32 v{vM + 3}, 0')
        k(f'v_cndmask_b32 v{vM}, 0, v6, vcc\nv_cndmask_b32 v{vM + 1}, 0, v6, vcc')
        k.wait(lg=t[-1])
        for bl in range(2):
            T = tmp + 8 * bl
            k(f'v_pk_add_f32 {v(T, 2)}, {v(T, 2)}, {v(T + 2, 2)}\nv_pk_add_f32 {v(T + 4, 2)}, {v(T + 4, 2)}, {v(T + 6, 2)}')
            k(f'v_pk_add_f32 {v(T, 2)}, {v(T, 2)}, {v(T + 4, 2)}\nv_add_f32 v{T}, v{T}, v{T + 1}')
            self.rank1_operand(T, T + 4)
        k.nop(2)
        for bl in range(2):
            k(f'v_mfma_f32_32x32x16_bf16 {v(accA + 16 * bl, 16)}, {v(tmp + 8 * bl + 4, 4)}, {v(vM, 4)}, {v(accA + 16 * bl, 16)}')
        k(f'v_mov_b32 v{vC0}, 0\nv_mov_b32 v{vC1}, 0')
        k.wait(vm=self.tokEp)
        k(f'v_readfirstlane_b32 s{sTag}, v{vEp}')
        k.nop(9)
        k(f's_add_u32 s{sTag}, s{sTag}, {TAGK}')
        self.flag_store(sPubF)
        self.gelu(accA, 32, tmp + 16)
        if self.stop == 'epiA0':
            self.dump([('v', accA + i) for i in range(32)] + [('v', vR), ('v', vSig), ('v', vM)])
            return True
        lz1 = k.label('Lz1')
        lj = k.label('Lj')
        n0 = k.vmn
        k(f's_cmp_eq_u32 s{sHasZ2}, 0\ns_cbranch_scc1 {lz1}')
        T = tmp
        k(f'v_pk_add_f32 {v(T, 2)}, {v(accA, 2)}, {v(accA + 2, 2)}\nv_pk_mul_f32 {v(T + 2, 2)}, {v(accA, 2)}, {v(accA, 2)}')
        k(f'v_pk_fma_f32 {v(T + 2, 2)}, {v(accA + 2, 2)}, {v(accA + 2, 2)}, {v(T + 2, 2)}')
        for i in (4, 6):
            k(f'v_pk_add_f32 {v(T, 2)}, {v(T, 2)}, {v(accA + i, 2)}\nv_pk_fma_f32 {v(T + 2, 2)}, {v(accA + i, 2)}, {v(accA + i, 2)}, {v(T + 2, 2)}')
        k(f'v_pk_mul_f32 {v(T, 2)}, {v(T, 2)}, {s(sMask0, 2)} op_sel_hi:[1,0]\nv_pk_mul_f32 {v(T + 2, 2)}, {v(T + 2, 2)}, {s(sMask0, 2)} op_sel_hi:[1,0]')
        for i in range(8, 32, 2):
            k(f'v_pk_add_f32 {v(T, 2)}, {v(T, 2)}, {v(accA + i, 2)}\nv_pk_fma_f32 {v(T + 2, 2)}, {v(accA + i, 2)}, {v(accA + i, 2)}, {v(T + 2, 2)}')
        k(f'v_add_f32 v{T + 4}, v{T}, v{T + 1}\nv_add_f32 v{T + 5}, v{T + 2}, v{T + 3}')
        k(f'v_and_b32 v2, 31, v{L}\nv_lshlrev_b32 v2, 4, v2\nv_lshl_add_u32 v2, v{vH}, 30, v2')
        self.swap_sum(T + 4, T + 5, 4)
        k(f'v_mov_b32 v{T + 6}, s{sTag}\nv_mov_b32 v{T + 7}, s{sTag}')
        k(f's_lshl_b32 s{sT0}, s{sMi}, 15\ns_lshl_b32 s{sT1}, s{sSlot}, 11\ns_add_u32 s{sT0}, s{sT0}, s{sT1}')
        k(f's_lshl_b32 s{sT1}, s{sWave}, 9\ns_add_u32 s{sT0}, s{sT0}, s{sT1}\ns_add_u32 s{sT0}, s{sT0}, {WS_E2}')
        k.vm(f'buffer_store_dwordx4 {v(T + 4, 4)}, v2, {s(sW, 4)}, s{sT0} offen sc1')
        k(f's_branch {lj}')
        k(f'{lz1}:')
        k.vmn = n0
        self.z1_store(accA, sZ1A, tmp)
        k(f'{lj}:')
        k.vmn = n0 + 1
        self.tokEpiA = k.vmn
        return False


    def sp_setup(self):
        k = self.k
        L = vLane
        k(f'v_lshrrev_b32 v2, 3, v{L}\nv_lshrrev_b32 v3, 4, v{L}\nv_and_b32 v4, 7, v{L}')
        k(f'v_xor_b32 v5, v4, v3\nv_lshlrev_b32 v5, 4, v5\nv_lshl_add_u32 v{vX}, v2, 12, v5\nv_xor_b32 v6, 64, v{vX}')
        D = 32768 - 1024
        k(f'v_add_u32 v{vX + 1}, {D}, v6\nv_add_u32 v{vX + 2}, {2 * D}, v{vX}\nv_add_u32 v{vX + 3}, {3 * D}, v6')
        k(f's_lshl_b32 s{sSb}, s{sM2}, 18\ns_and_b32 s{sT0}, s{sWave}, 1\ns_lshr_b32 s{sT1}, s{sWave}, 1\ns_lshl_b32 s{sT1}, s{sT1}, 4')
        k(f's_add_u32 s{sT1}, s{sT1}, s{sT0}\ns_lshl_b32 s{sT1}, s{sT1}, 7\ns_add_u32 s{sSb}, s{sSb}, s{sT1}')
        k(f's_lshl_b32 s{sT0}, s{sT0}, 17\ns_or_b32 s{sSb}, s{sSb}, s{sT0}')
        self.tokS = {}

    def sp_slot(self, pi):
        return pi if pi < 7 else pi - 7

    def dmaS_ops(self, pi):
        k = self.k
        p, j = pi >> 1, pi & 1
        slot = self.sp_slot(pi)
        ops = []

        def o0():
            if j:
                k(f's_xor_b32 s{sT6}, s{sSb}, {1 << 17}\ns_add_u32 s{sT6}, s{sT6}, {256 * p}')
            else:
                k(f's_add_u32 s{sT6}, s{sSb}, {256 * p}')
            if slot < 8:
                k(f's_add_u32 m0, s{sRw}, {4096 * slot}')
            else:
                k(f's_lshl_b32 s{sT5}, s{sWave}, 12\ns_add_u32 m0, s{sT5}, {EX}')
            k.nop(1)
        ops.append(o0)
        for c in range(4):
            def o(c=c):
                self.tokS[pi] = k.vm(f'buffer_load_dwordx4 v{vX + c}, {s(sS, 4)}, s{sT6} offen offset:{1024 * c} lds')
            ops.append(o)
        return ops

    def sp_move(self, pis):
        k = self.k
        k.wait(vm=self.tokS[pis[-1]])
        for pi in pis:
            for ks in range(4):
                k.ds(f'ds_read_b128 {a(aW + 16 * pi + 4 * ks, 4)}, v{vXR + ks} offset:{4096 * pi}')
        self.tok_move = k.lgn

    def sp_refill(self, pis):
        k = self.k
        k.wait(lg=self.tok_move)
        for pi in pis:
            for op in self.dmaS_ops(pi + 7):
                op()

    def e2_load_ops(self):
        k = self.k
        L = vLane
        ops = []

        def o0():
            k(f'v_and_b32 v2, 31, v{L}\nv_lshlrev_b32 v2, 4, v2\nv_lshl_add_u32 v3, v{vH}, 30, v2\nv_lshl_add_u32 v2, v{vH}, 11, v2')
            k(f's_lshl_b32 s{sT0}, s{sMi}, 15\ns_lshl_b32 s{sT1}, s{sWave}, 9\ns_add_u32 s{sT0}, s{sT0}, s{sT1}\ns_add_u32 s{sT0}, s{sT0}, {WS_E2}')
            k(f's_cmp_eq_u32 s{sHasZ2}, 0\ns_cselect_b32 s{sZb}, {BIG}, s{sT0}')
        ops.append(o0)
        for i in range(6):
            def o(i=i):
                k(f's_add_u32 s{sT0}, s{sZb}, {4096 * i}')
                self.tokE2 = k.vm(f'buffer_load_dwordx4 {v(tmp + 4 * i, 4)}, v{3 if i == 5 else 2}, {s(sW, 4)}, s{sT0} offen sc1')
            ops.append(o)
        return ops

    def e2_check(self):
        k = self.k
        for i in range(6):
            k(f'v_cmp_ne_u32 vcc, s{sTag}, v{tmp + 4 * i + 2}')
            k.nop(1)
            if i == 0:
                k(f's_mov_b64 {s(sRdy, 2)}, vcc')
            elif i < 5:
                k(f's_or_b64 {s(sRdy, 2)}, {s(sRdy, 2)}, vcc')
            else:
                k(f's_or_b32 s{sRdy}, s{sRdy}, vcc_lo')
        k(f's_or_b32 s{sRdy}, s{sRdy}, s{sRdy + 1}')

    def normalize(self):
        k = self.k
        L = vLane
        lskip = k.label('Lnz')
        lok = k.label('Lok')
        lre = k.label('Lre')
        k.wait(vm=self.tokE2, lg=k.lgn)
        n0 = k.vmn
        k(f's_cmp_eq_u32 s{sHasZ2}, 0\ns_cbranch_scc1 {lskip}')
        self.e2_check()
        k(f's_cbranch_scc0 {lok}')
        k(f's_mov_b32 s{sCnt}, 0')
        k(f'{lre}:')
        for i in range(6):
            k(f's_add_u32 s{sT0}, s{sZb}, {4096 * i}')
            k(f'buffer_load_dwordx4 {v(tmp + 4 * i, 4)}, v{3 if i == 5 else 2}, {s(sW, 4)}, s{sT0} offen sc1')
        k(f's_add_u32 s{sCnt}, s{sCnt}, 1\ns_cmp_gt_u32 s{sCnt}, {SPIN}\ns_waitcnt vmcnt(0)\ns_cbranch_scc1 {lok}')
        self.e2_check()
        k(f's_cbranch_scc1 {lre}')
        k(f'{lok}:')
        T = tmp
        k(f'v_pk_add_f32 {v(T, 2)}, {v(T, 2)}, {v(T + 4, 2)}\nv_pk_add_f32 {v(T + 8, 2)}, {v(T + 8, 2)}, {v(T + 12, 2)}')
        k(f'v_pk_add_f32 {v(T + 16, 2)}, {v(T + 16, 2)}, {v(T + 20, 2)}\nv_pk_add_f32 {v(T, 2)}, {v(T, 2)}, {v(T + 8, 2)}')
        k(f'v_pk_add_f32 {v(T, 2)}, {v(T, 2)}, {v(T + 16, 2)}')
        k(f's_lshl_b32 s{sT0}, s{sWave}, 12\ns_add_u32 s{sT0}, s{sT0}, {EX + 8192}')
        self.tr64_addrs(sT0, 4, 8)
        self.swap_sum(T, T + 1, 0)
        k(f'v_mul_f32 v{T}, {f32(1 / 688)}, v{T}')
        k(f'v_mul_f32 v{T + 2}, v{T}, v{T}\nv_mov_b32 v{T + 3}, {f32(1 / 688)}\nv_fma_f32 v{T + 2}, v{T + 1}, v{T + 3}, -v{T + 2}')
        k(f'v_max_f32 v{T + 2}, 0, v{T + 2}\nv_add_f32 v{T + 2}, {f32(1e-5)}, v{T + 2}\nv_rsq_f32 v{T + 2}, v{T + 2}')
        k.nop(1)
        k(f'v_mul_f32 v{T + 4}, v{T}, -v{T + 2}')
        for i in range(0, 32, 2):
            k(f'v_pk_fma_f32 {v(accA + i, 2)}, {v(accA + i, 2)}, {v(T + 2, 2)}, {v(T + 4, 2)} op_sel_hi:[1,0,0]')
        P = T + 8
        for i in range(16):
            k(f'v_cvt_pk_bf16_f32 v{P + i}, v{accA + 2 * i}, v{accA + 2 * i + 1}')
            if i & 1:
                bl, aa = i >> 3, (i >> 1) & 3
                k.ds(f'ds_write_b64 v{4 + aa}, {v(P + i - 1, 2)} offset:{2048 * bl}')
        F = T + 24
        for bl in range(2):
            for ks in range(2):
                for t in range(2):
                    k.ds(f'ds_read_b64_tr_b16 {v(F + 8 * bl + 4 * ks + 2 * t, 2)}, v{8 + t} offset:{2048 * bl + 1024 * ks}')
        k(f's_lshl_b32 s{sT0}, s{sSlot}, 18\ns_lshl_b32 s{sT1}, s{sTg}, 11\ns_add_u32 s{sT0}, s{sT0}, s{sT1}\ns_add_u32 s{sT0}, s{sT0}, {WS_Z2N}')
        k(f's_add_u32 s{sT1}, s{sT0}, 0x20000\nv_lshlrev_b32 v2, 4, v{L}')
        for bl in range(2):
            k.wait(lg=k.lgn - (4 if bl == 0 else 0))
            for ks in range(2):
                k.vm(f'buffer_store_dwordx4 {v(F + 8 * bl + 4 * ks, 4)}, v2, {s(sW, 4)}, s{sT0 + bl} offen offset:{1024 * ks} sc1')
        k(f'{lskip}:')
        k.vmn = n0
        self.tokZ2 = n0

    def tr64_addrs(self, sbase, vw, vr):
        k = self.k
        L = vLane
        k(f'v_and_b32 v10, 31, v{L}\nv_lshlrev_b32 v10, 6, v10\nv_bfe_u32 v11, v{L}, 1, 3\nv_xor_b32 v11, v11, v{vH}')
        k(f'v_lshl_add_u32 v10, v11, 3, v10\nv_add_u32 v{vw}, s{sbase}, v10')
        for aa in range(1, 4):
            k(f'v_xor_b32 v{vw + aa}, {16 * aa}, v{vw}')
        k(f'v_bfe_u32 v10, v{L}, 2, 2\nv_lshl_add_u32 v10, v{vH}, 3, v10\nv_lshlrev_b32 v10, 6, v10')
        k(f'v_bfe_u32 v11, v{L}, 4, 1\nv_xor_b32 v11, v11, v{vH}\nv_lshlrev_b32 v11, 2, v11')
        k(f'v_and_b32 v12, 3, v{L}\nv_bfe_u32 v13, v{L}, 3, 1\nv_xor_b32 v12, v12, v13\nv_or_b32 v11, v11, v12')
        k(f'v_lshl_add_u32 v10, v11, 3, v10\nv_add_u32 v{vr}, s{sbase}, v10')
        k(f'v_xor_b32 v{vr + 1}, 16, v{vr}\nv_add_u32 v{vr + 1}, 256, v{vr + 1}')

    def flag_store(self, sreg_off, vtmp=14):
        k = self.k
        k(f'v_mov_b32 v{vtmp}, s{sTag}')
        return k.vm(f'buffer_store_dword v{vtmp}, v{vL0}, {s(sW, 4)}, s{sreg_off} offen sc1')

    def passB(self):
        k = self.k
        L = vLane
        self.sp_setup()
        frs = [(p, ks, bb) for p in range(8) for ks in range(4) for bb in range(4)]
        LA = 5
        tokf = {}

        def rd(n, t):
            p, ks, bb = frs[n]
            j, b = bb >> 1, bb & 1
            off = 32768 * (ks >> 1) + 4096 * p + 2048 * (ks & 1) + 512 * t
            tokf[n] = k.ds(f'ds_read_b64_tr_b16 {v(wfB + 4 * (n & 7) + 2 * t, 2)}, v{vTB + 2 * j + b} offset:{off}')

        def rdc(p, i):
            b, kk, t = i >> 2, (i >> 1) & 1, i & 1
            self.tokc = k.ds(f'ds_read_b64_tr_b16 {v(cf + 8 * b + 4 * kk + 2 * t, 2)}, v{vTCB + b} offset:{4096 * p + 2048 * kk + 512 * t}')

        k.wait(vm=self.tokB[1])
        k('s_barrier')
        self.stamp()
        for n in range(LA):
            rd(n, 0)
            rd(n, 1)
        for p in range(8):
            extra = []
            if p >= 1:
                if p < 7:
                    k.wait(vm=self.tokB[p + 1])
                k('s_barrier')
                extra += self.dmaS_ops(p - 1)
            if p == E2_STAGE:
                extra = self.e2_load_ops() + extra
            if p == E2_STAGE + 1:
                self.normalize()
                if self.stop == 'norm':
                    self.dump([('v', accA + i) for i in range(32)])
                    return True
            extra = [lambda i=i: rdc(p, i) for i in range(8)] + extra
            ne = len(extra)
            done = 0
            for q in range(16):
                n = 16 * p + q
                _, ks, bb = frs[n]
                k.wait(lg=tokf[n])
                c = '0' if (p == 0 and ks == 0) else v(accB + 16 * bb, 16)
                k(f'v_mfma_f32_32x32x16_bf16 {v(accB + 16 * bb, 16)}, {v(wfB + 4 * (n & 7), 4)}, {a(16 * p + 4 * ks, 4)}, {c}')
                if n + LA < 128:
                    rd(n + LA, 0)
                    rd(n + LA, 1)
                tgt = min(ne, (ne * (q + 1) + 11) // 12)
                while done < tgt:
                    extra[done]()
                    done += 1
            k.wait(lg=self.tokc)
            for i in range(16):
                b, jj = i & 1, i >> 1
                k(f'v_dot2c_f32_bf16 v{vC0 + b}, s{sOnes}, v{cf + 8 * b + jj}')
        return False

    def wphi_load_ops(self):
        k = self.k
        L = vLane
        ops = []

        def o0():
            k(f'v_bfe_u32 v4, v{L}, 2, 1\nv_lshlrev_b32 v4, 9, v4\nv_lshl_add_u32 v4, v{vH}, 7, v4')
            k(f'v_bfe_u32 v5, v{L}, 3, 2\nv_lshl_add_u32 v4, v5, 3, v4\nv_and_b32 v5, 3, v{L}\nv_lshl_add_u32 v4, v5, 1, v4')
            k(f's_lshl_b32 s{sT0}, s{sA}, 11')
        ops.append(o0)
        for blk in range(2):
            for e in range(8):
                def o(blk=blk, e=e):
                    self.tokP = k.vm(f'buffer_load_ushort a{aP + 8 * blk + e}, v4, {s(sP, 4)}, s{sT0} offen offset:{1024 * blk + (8 * (e >> 2) + (e & 3)) * 32}')
                ops.append(o)
        return ops

    def softmax(self, D, E, PH):
        k = self.k
        mx, mn, bp, bn = 2, 3, 4, 6
        k(f'v_max3_f32 v{mx}, v{D}, v{D + 1}, v{D + 2}\nv_min3_f32 v{mn}, v{D}, v{D + 1}, v{D + 2}')
        for i in range(3, 15, 2):
            k(f'v_max3_f32 v{mx}, v{mx}, v{D + i}, v{D + i + 1}\nv_min3_f32 v{mn}, v{mn}, v{D + i}, v{D + i + 1}')
        k(f'v_max_f32 v{mx}, v{mx}, v{D + 15}\nv_min_f32 v{mn}, v{mn}, v{D + 15}')
        k(f'v_mul_f32 v{bp}, v{mx}, -v{vRL}\nv_mul_f32 v{bn}, v{mn}, v{vRL}')
        for i in range(0, 16, 2):
            k(f'v_pk_fma_f32 {v(E + i, 2)}, {v(D + i, 2)}, {v(vRL, 2)}, {v(bp, 2)} op_sel_hi:[1,0,0]')
            k(f'v_pk_fma_f32 {v(E + 16 + i, 2)}, {v(D + i, 2)}, {v(vRL, 2)}, {v(bn, 2)} op_sel_hi:[1,0,0] neg_lo:[0,1,0] neg_hi:[0,1,0]')
        for i in range(32):
            k(f'v_exp_f32 v{E + i}, v{E + i}')
        s0, s1 = 8, 10
        k(f'v_pk_add_f32 {v(s0, 2)}, {v(E, 2)}, {v(E + 2, 2)}\nv_pk_add_f32 {v(s1, 2)}, {v(E + 16, 2)}, {v(E + 18, 2)}')
        for i in range(4, 16, 2):
            k(f'v_pk_add_f32 {v(s0, 2)}, {v(s0, 2)}, {v(E + i, 2)}\nv_pk_add_f32 {v(s1, 2)}, {v(s1, 2)}, {v(E + 16 + i, 2)}')
        k(f'v_add_f32 v{s0}, v{s0}, v{s0 + 1}\nv_add_f32 v{s1}, v{s1}, v{s1 + 1}')
        k(f'v_rcp_f32 v{s0}, v{s0}\nv_rcp_f32 v{s1}, v{s1}')
        k.nop(1)
        for i in range(0, 32, 2):
            k(f'v_pk_mul_f32 {v(E + i, 2)}, {v(E + i, 2)}, {v(s0 if i < 16 else s1, 2)} op_sel_hi:[1,0]')
        for i in range(16):
            k(f'v_cvt_pk_bf16_f32 v{PH + i}, v{E + 2 * i}, v{E + 2 * i + 1}')

    def epiB_common(self):
        k = self.k
        L = vLane
        k(f'v_and_b32 v2, 31, v{L}\nv_lshlrev_b32 v2, 4, v2\nv_add_u32 v2, {EX}, v2')
        k(f's_lshr_b32 s{sT0}, s{sWave}, 1\ns_lshl_b32 s{sT0}, s{sT0}, 10\ns_and_b32 s{sT1}, s{sWave}, 1\ns_lshl_b32 s{sT1}, s{sT1}, 3\ns_add_u32 s{sT0}, s{sT0}, s{sT1}')
        k(f'v_lshl_add_u32 v3, v{vH}, 2, v2\nv_add_u32 v3, s{sT0}, v3')
        k.ds(f'ds_write_b32 v3, v{vC0}')
        tw = k.ds(f'ds_write_b32 v3, v{vC1} offset:512')
        k(f'v_mul_f32 v{vRL}, {f32(math.log2(math.e))}, v{vR}')
        k.wait(lg=tw)
        k('s_barrier')
        for bb in range(4):
            tr = k.ds(f'ds_read_b128 {v(tmp + 8 * bb, 4)}, v2 offset:{512 * bb}')
        k.force_vm(self.tokZ2)
        k(f's_lshl_b32 s{sT0}, s{sSlot}, 8\ns_lshl_b32 s{sT1}, s{sTg}, 2\ns_add_u32 s{sT0}, s{sT0}, s{sT1}\ns_add_u32 s{sT0}, s{sT0}, {WS_FZ2}')
        k(f's_cmp_eq_u32 s{sHasZ2}, 0\ns_cselect_b32 s{sT0}, {BIG}, s{sT0}')
        self.flag_store(sT0)
        self.sp_move([0, 1, 2, 3])
        Wp = accA + 16
        for i in range(16):
            k(f'v_accvgpr_read_b32 v{accA + i}, a{aP + i}')
        for i in range(8):
            k(f'v_lshl_or_b32 v{Wp + i}, v{accA + 2 * i + 1}, 16, v{accA + 2 * i}')
        k(f'v_and_b32 v4, 4, v{L}\nv_cmp_eq_u32 vcc, 0, v4')
        k.wait(lg=tr)
        for bb in range(4):
            T = tmp + 8 * bb
            k(f'v_pk_add_f32 {v(T, 2)}, {v(T, 2)}, {v(T + 2, 2)}\nv_add_f32 v{T}, v{T}, v{T + 1}')
            self.rank1_operand(T, T + 4)
        k.nop(1)
        for bb in range(4):
            k(f'v_mfma_f32_32x32x16_bf16 {v(accB + 16 * bb, 16)}, {v(tmp + 8 * bb + 4, 4)}, {v(vM, 4)}, {v(accB + 16 * bb, 16)}')
        AO = 176
        for blk in range(2):
            for i in range(4):
                k(f'v_cndmask_b32 v{AO + 8 * blk + i}, 0, v{Wp + 4 * blk + i}, vcc')
                k(f'v_cndmask_b32 v{AO + 8 * blk + 4 + i}, v{Wp + 4 * blk + i}, 0, vcc')
        self.sp_refill([0, 1, 2, 3])
        if self.stop == 'qkv':
            self.dump([('v', accB + i) for i in range(64)] + [('v', vR)])
            return True
        Pk = 160
        for blk in range(2):
            for i in range(8):
                k(f'v_cvt_pk_bf16_f32 v{Pk + 8 * blk + i}, v{accB + 16 * blk + 2 * i}, v{accB + 16 * blk + 2 * i + 1}')
        k.nop(1)
        D = (accA, accA + 16 + 16)
        D = (accA, accB)
        for blk in range(2):
            k(f'v_mfma_f32_32x32x16_bf16 {v(D[blk], 16)}, {v(AO + 8 * blk, 4)}, {v(Pk + 8 * blk, 4)}, 0')
            k(f'v_mfma_f32_32x32x16_bf16 {v(D[blk], 16)}, {v(AO + 8 * blk + 4, 4)}, {v(Pk + 8 * blk + 4, 4)}, {v(D[blk], 16)}')
        self.sp_move([4, 5, 6])
        k.nop(4)
        self.softmax(D[0], 192, vPhi)
        self.sp_refill([4, 5, 6])
        self.softmax(D[1], 192, vPhi + 16)
        if self.stop == 'phi':
            self.dump([('v', vPhi + i) for i in range(32)])
            return True
        return False

    def poll(self, vdst, voff, soff, lanes_mask_s=None):
        k = self.k
        l0 = k.label('Lp')
        l1 = k.label('Lq')
        k(f's_mov_b32 s{sCnt}, 0\n{l0}:')
        k(f'buffer_load_dword v{vdst}, v{voff}, {s(sW, 4)}, s{soff} offen sc1')
        k(f's_add_u32 s{sCnt}, s{sCnt}, 1\ns_cmp_gt_u32 s{sCnt}, {SPIN}\ns_waitcnt vmcnt(0)\ns_cbranch_scc1 {l1}')
        k(f'v_cmp_ne_u32 vcc, s{sTag}, v{vdst}\ns_nop 1')
        if lanes_mask_s is not None:
            k(f's_and_b64 vcc, vcc, {lanes_mask_s}')
        else:
            k(f's_and_b64 vcc, vcc, exec')
        k(f's_cbranch_scc1 {l0}\n{l1}:')
        k.vmdone = k.vmn

    def epiX(self):
        k = self.k
        L = vLane
        V = accB + 32
        self.p2_setup()
        for i in range(0, 32, 2):
            k(f'v_pk_mul_f32 {v(V + i, 2)}, {v(V + i, 2)}, {v(vR, 2)} op_sel_hi:[1,0]')
        k(f's_add_u32 s{sT0}, s{sRw}, 28672')
        self.tr64_addrs(sT0, 4, 8)
        k(f's_lshl_b32 s{sT2}, s{sA}, 7\ns_lshl_b32 s{sT1}, s{sWave}, 2\ns_add_u32 s{sT2}, s{sT2}, s{sT1}\ns_add_u32 s{sT2}, s{sT2}, {WS_FZ}')
        k(f'v_mov_b32 v14, 0')
        tz = k.vm(f'buffer_load_dword v15, v14, {s(sW, 4)}, s{sT2} offen sc1')
        P = 160
        k('s_barrier')
        for i in range(16):
            k(f'v_cvt_pk_bf16_f32 v{P + i}, v{V + 2 * i}, v{V + 2 * i + 1}')
            if i & 1:
                bl, aa = i >> 3, (i >> 1) & 3
                k.ds(f'ds_write_b64 v{4 + aa}, {v(P + i - 1, 2)} offset:{2048 * bl}')
        k(f'v_and_b32 v2, 31, v{L}\nv_lshlrev_b32 v2, 7, v2\ns_lshl_b32 s{sT0}, s{sWave}, 12\ns_add_u32 s{sT0}, s{sT0}, {EX}')
        k(f'v_bfe_u32 v3, v{L}, 1, 1\nv_xor_b32 v3, v3, v{vH}\nv_lshlrev_b32 v3, 2, v3')
        k(f'v_bfe_u32 v10, v{L}, 2, 1\nv_lshl_or_b32 v3, v10, 1, v3\nv_and_b32 v10, 1, v{L}\nv_or_b32 v3, v3, v10')
        k(f'v_lshl_add_u32 v2, v3, 4, v2\nv_add_u32 v2, s{sT0}, v2')
        for j in range(4):
            if j:
                k(f'v_xor_b32 v3, {16 * j}, v2')
            for blk in range(2):
                k.ds(f'ds_write_b128 v{3 if j else 2}, {v(vPhi + 16 * blk + 4 * j, 4)} offset:{16384 * blk}')
        k(f's_and_b32 s{sT0}, s{sWave}, 1\ns_lshr_b32 s{sT1}, s{sWave}, 1\ns_lshl_b32 s{sT3}, s{sT1}, 14\ns_add_u32 s{sT3}, s{sT3}, {EX}')
        k(f'v_bfe_u32 v4, v{L}, 2, 2\nv_lshl_add_u32 v4, v{vH}, 3, v4\nv_lshlrev_b32 v4, 7, v4')
        k(f'v_bfe_u32 v5, v{L}, 3, 1\nv_xor_b32 v5, s{sT0}, v5\nv_lshlrev_b32 v5, 2, v5')
        k(f'v_bfe_u32 v6, v{L}, 4, 1\nv_lshl_or_b32 v5, v6, 1, v5')
        k(f'v_bfe_u32 v6, v{L}, 1, 1\nv_bfe_u32 v7, v{L}, 2, 1\nv_xor_b32 v6, v6, v7\nv_or_b32 v5, v5, v6')
        k(f'v_lshl_add_u32 v4, v5, 4, v4\nv_and_b32 v6, 1, v{L}\nv_lshl_add_u32 v4, v6, 3, v4\nv_add_u32 v4, s{sT3}, v4')
        k(f'v_xor_b32 v5, 32, v4\nv_add_u32 v5, 512, v5')
        k(f'v_bfe_u32 v6, v{L}, 2, 2\nv_lshl_add_u32 v6, v{vH}, 3, v6\nv_lshlrev_b32 v6, 6, v6')
        k(f'v_xor_b32 v7, s{sT0}, v{vH}\nv_lshlrev_b32 v7, 2, v7\nv_and_b32 v10, 3, v{L}\nv_bfe_u32 v11, v{L}, 3, 1\nv_xor_b32 v10, v10, v11\nv_or_b32 v7, v7, v10')
        k(f's_lshl_b32 s{sT1}, s{sT1}, 11\ns_add_u32 s{sT1}, s{sT1}, 28672')
        k(f'v_lshl_add_u32 v6, v7, 3, v6\nv_add_u32 v6, s{sT1}, v6\nv_xor_b32 v7, 16, v6\nv_add_u32 v7, 256, v7')
        k(f'v_add_u32 v8, 0x10000, v6\nv_add_u32 v9, 0x10000, v7')
        k(f'v_and_b32 v10, 16, v{L}\nv_cmp_ne_u32 vcc, 0, v10\nv_mov_b32 v11, s{sOnes}')
        k.wait(lg=k.lgn)
        k('s_barrier')
        FA, FB, D = 160, 192, 144
        tk = []
        for kst in range(8):
            u = kst >> 1
            for t in range(2):
                k.ds(f'ds_read_b64_tr_b16 {v(FA + 4 * kst + 2 * t, 2)}, v{(6 if u < 2 else 8) + t} offset:{32768 * (u & 1) + 1024 * (kst & 1)}')
            for t in range(2):
                x = k.ds(f'ds_read_b64_tr_b16 {v(FB + 4 * kst + 2 * t, 2)}, v{4 + t} offset:{2048 * kst}')
            tk.append(x)
        for kst in range(8):
            k.wait(lg=tk[kst])
            for i in range(4):
                k(f'v_cndmask_b32 v{FA + 4 * kst + i}, v{FA + 4 * kst + i}, v11, vcc')
            k.nop(2)
            k(f'v_mfma_f32_32x32x16_bf16 {v(D, 16)}, {v(FA + 4 * kst, 4)}, {v(FB + 4 * kst, 4)}, {"0" if kst == 0 else v(D, 16)}')
        self.p2_prologue()
        k('s_barrier')
        for pi in (14, 15):
            for op in self.dmaS_ops(pi):
                op()
        lok = k.label('Lzok')
        k.wait(vm=tz)
        k(f'v_cmp_ne_u32 vcc, s{sTag}, v15\ns_nop 1\ns_and_b64 vcc, vcc, exec\ns_cbranch_scc0 {lok}')
        sv = k.vmdone
        self.poll(15, 14, sT2)
        k.vmdone = sv
        k(f'{lok}:')
        k(f'v_and_b32 v2, 31, v{L}\nv_lshlrev_b32 v2, 2, v2\nv_lshl_add_u32 v3, v{vH}, 30, v2\nv_lshl_add_u32 v2, v{vH}, 9, v2')
        k(f's_lshl_b32 s{sT0}, s{sA}, 2\ns_add_u32 s{sT0}, s{sT0}, s{sWave}\ns_mul_i32 s{sT0}, s{sT0}, 2176\ns_add_u32 s{sT0}, s{sT0}, {WS_KV}')
        k.nop(2)
        for r in range(8):
            k.vm(f'buffer_atomic_add_f32 v{D + r}, v2, {s(sW, 4)}, s{sT0} offen offset:{(8 * (r >> 2) + (r & 3)) * 128}')
        self.tokPub = k.vm(f'buffer_atomic_add_f32 v{D + 8}, v3, {s(sW, 4)}, s{sT0} offen offset:2048')
        k(f's_lshl_b32 s{sPubF}, s{sA}, 6\ns_add_u32 s{sPubF}, s{sPubF}, s{sTg}\ns_lshl_b32 s{sPubF}, s{sPubF}, 2\ns_add_u32 s{sPubF}, s{sPubF}, {WS_FKV}')

    def epiY(self):
        k = self.k
        for pi in (14,):
            for op in self.dmaS_ops(pi):
                op()
        self.p2_setup()
        self.gelu(accB + 32, 32, 160)
        for i in range(16):
            k(f'v_cvt_pk_bf16_f32 v{176 + i}, v{accB + 32 + 2 * i}, v{accB + 33 + 2 * i}')
        self.p2_prologue()
        k(f'v_lshlrev_b32 v2, 4, v{vLane}')
        for hb in range(4):
            self.tokPub = k.vm(f'buffer_store_dwordx4 {v(176 + 4 * hb, 4)}, v2, {s(sW, 4)}, s{sZ1B} offen offset:{1024 * hb} sc1')
        k('s_barrier')
        for op in self.dmaS_ops(15):
            op()
        k(f's_lshl_b32 s{sPubF}, s{sA}, 6\ns_add_u32 s{sPubF}, s{sPubF}, s{sTg}\ns_lshl_b32 s{sPubF}, s{sPubF}, 2\ns_add_u32 s{sPubF}, s{sPubF}, {WS_FY}')


    def p2_setup(self):
        k = self.k
        L = vLane
        k(f's_lshr_b32 s{sT0}, s{sWave}, 1\ns_lshl_b32 s{sT1}, s{sT0}, 4\nv_xor_b32 v{vZ}, s{sT1}, v{L}\nv_lshlrev_b32 v{vZ}, 4, v{vZ}')
        k(f's_and_b32 s{sT2}, s{sWave}, 1\ns_add_u32 s{sT1}, s{sT1}, s{sT2}')
        k(f's_mul_i32 s{sT3}, s{sN2}, 3')
        k(f's_lshl_b32 s{sT4}, s{sT1}, 12\ns_add_u32 s{sT4}, s{sT4}, {WS_Z2N}')
        for b in range(3):
            k(f's_add_u32 s{sT5}, s{sT3}, {b}\ns_lshl_b32 s{sT6}, s{sT5}, 17\ns_add_u32 s{sT6}, s{sT6}, s{sT4}')
            k(f's_cmp_le_u32 s{sT5}, 21\ns_cselect_b32 s{sZ0 + b}, s{sT6}, {BIG}')
        k(f's_lshr_b32 s{sT3}, s{sT3}, 1\nv_bfe_u32 v2, v{L}, 1, 1\nv_add_u32 v2, s{sT3}, v2\nv_min_u32 v2, 10, v2')
        k(f'v_bfe_u32 v3, v{L}, 2, 3\nv_lshlrev_b32 v3, 2, v3\nv_and_b32 v4, 1, v{L}\nv_add_u32 v3, v3, v4')
        k(f's_lshl_b32 s{sT1}, s{sT1}, 1\nv_add_u32 v3, s{sT1}, v3\nv_lshlrev_b32 v3, 2, v3\nv_lshl_add_u32 v{vF}, v2, 8, v3')
        k(f's_mov_b32 s{sFb}, {WS_FZ2}')
        self.tokF = k.vm(f'buffer_load_dword v{vFd}, v{vF}, {s(sW, 4)}, s{sFb} offen sc1')
        k(f's_mul_i32 s{sT1}, s{sWave}, 28672\ns_sub_u32 s{sT1}, {EX}, s{sT1}')
        for ks in range(4):
            k(f'v_add_u32 v{vXE + ks}, s{sT1}, v{vXR + ks}')
        k(f's_lshl_b32 s{sTg2}, s{sM2}, 1\ns_add_u32 s{sTg2}, s{sTg2}, s{sT2}')
        k(f's_mul_i32 s{sFg}, s{sN2}, 6\ns_add_u32 s{sFg}, s{sFg}, s{sT0}\ns_sub_u32 s{sFg}, s{sFg}, 1')
        k(f'v_and_b32 v2, 31, v{L}\nv_lshlrev_b32 v2, 1, v2\ns_lshl_b32 s{sT1}, s{sTg2}, 6')
        k.vm(f'buffer_load_ushort v{vBs}, v2, {s(sB, 4)}, s{sT1} offen')

    def p2_check(self, p):
        k = self.k
        ls = k.label('Ls')
        lb = k.label('Lb')
        m = 0xF << (4 * p)
        k.wait(vm=self.tokF)
        k(f'v_cmp_ne_u32 vcc, s{sTag}, v{vFd}')
        k.nop(1)
        k(f's_and_b32 s{sT0}, vcc_lo, {m}\ns_cbranch_scc1 {ls}\n{lb}:')
        self.tail.append((ls, lb, vFd, vF, sFb, m))
        if p < 7:
            self.tokF = k.vm(f'buffer_load_dword v{vFd}, v{vF}, {s(sW, 4)}, s{sFb} offen sc1')

    def chk(self, tok, vd, vo, so, m):
        k = self.k
        ls = k.label('Ls')
        lb = k.label('Lb')
        k.wait(vm=tok)
        k(f'v_cmp_ne_u32 vcc, s{sTag}, v{vd}')
        k.nop(1)
        if m is None:
            k(f's_and_b64 vcc, vcc, exec')
        else:
            k(f's_and_b32 s{sT0}, vcc_lo, {m}')
        k(f's_cbranch_scc1 {ls}\n{lb}:')
        self.tail.append((ls, lb, vd, vo, so, m))

    def emit_tail(self):
        k = self.k
        for (ls, lb, vd, vo, so, m) in self.tail:
            l2 = k.label('Lt')
            k(f'{ls}:\ns_mov_b32 s{sCnt}, 0\n{l2}:')
            k(f'buffer_load_dword v{vd}, v{vo}, {s(sW, 4)}, s{so} offen sc1')
            k(f's_add_u32 s{sCnt}, s{sCnt}, 1\ns_cmp_gt_u32 s{sCnt}, {SPIN}\ns_waitcnt vmcnt(0)\ns_cbranch_scc1 {lb}')
            k(f'v_cmp_ne_u32 vcc, s{sTag}, v{vd}\ns_nop 1')
            if m is None:
                k(f's_and_b64 vcc, vcc, exec')
            else:
                k(f's_and_b32 s{sT0}, vcc_lo, {m}')
            k(f's_cbranch_scc1 {l2}\ns_branch {lb}')
        self.tail = []

    def zload_ops(self, n):
        k = self.k
        p, ks = n >> 2, n & 3
        ops = []
        if ks == 0:
            def o0():
                self.p2_check(p)
                if p:
                    for b in range(3):
                        k(f's_add_u32 s{sZ0 + b}, s{sZ0 + b}, 8192')
            ops.append(o0)
        for b in range(3):
            def o(b=b):
                self.tokZ[n] = k.vm(f'buffer_load_dwordx4 {v(zb + 12 * (n % ZD) + 4 * b, 4)}, v{vZ}, {s(sW, 4)}, s{sZ0 + b} offen offset:{1024 * ks} sc1')
            ops.append(o)
        return ops

    def p2_prologue(self):
        self.tokZ = {}
        for n in range(ZD - 1):
            for op in self.zload_ops(n):
                op()

    def o_step(self, stage):
        k = self.k
        L = vLane
        KS = EX + 16384
        T = 152
        ops = []
        if stage == 0:
            def f():
                k(f'v_lshlrev_b32 v{T}, 2, v{L}\ns_lshl_b32 s{sKf}, s{sA}, 8\ns_add_u32 s{sKf}, s{sKf}, {WS_FKV}')
                self.tokKf = k.vm(f'buffer_load_dword v{T + 1}, v{T}, {s(sW, 4)}, s{sKf} offen sc1')
            ops.append(f)
        if stage == 1:
            def f():
                self.chk(self.tokKf, T + 1, T, sKf, None)
                k(f'v_lshlrev_b32 v{T}, 4, v{L}\nv_cmp_gt_u32 vcc, 8, v{L}')
                k(f's_lshl_b32 s{sT0}, s{sA}, 2\ns_add_u32 s{sT0}, s{sT0}, s{sWave}\ns_mul_i32 s{sT0}, s{sT0}, 2176\ns_add_u32 s{sT0}, s{sT0}, {WS_KV}')
                k(f'v_cndmask_b32 v{T + 1}, v{vBig}, v{T}, vcc')
                k.vm(f'buffer_load_dwordx4 {v(T + 4, 4)}, v{T}, {s(sW, 4)}, s{sT0} offen sc1')
                k.vm(f'buffer_load_dwordx4 {v(T + 8, 4)}, v{T}, {s(sW, 4)}, s{sT0} offen offset:1024 sc1')
                self.tokKl = k.vm(f'buffer_load_dwordx4 {v(T + 12, 4)}, v{T + 1}, {s(sW, 4)}, s{sT0} offen offset:2048 sc1')
            ops.append(f)

            def f2():
                k(f'v_lshrrev_b32 v{T}, 3, v{L}\nv_mul_u32_u24 v{T}, 80, v{T}\nv_and_b32 v{T + 1}, 7, v{L}\nv_lshl_add_u32 v{T}, v{T + 1}, 3, v{T}')
                k(f's_mul_i32 s{sT0}, s{sWave}, 2048\ns_add_u32 s{sT0}, s{sT0}, {KS}\nv_add_u32 v{T}, s{sT0}, v{T}')
            ops.append(f2)

            def f3():
                k(f'v_bfe_u32 v{T + 1}, v{L}, 3, 2\nv_lshlrev_b32 v{T + 1}, 2, v{T + 1}\nv_and_b32 v{T + 2}, 3, v{L}\nv_or_b32 v{T + 1}, v{T + 1}, v{T + 2}')
                k(f'v_bfe_u32 v{T + 2}, v{L}, 2, 1\nv_cmp_eq_u32 vcc, v{T + 2}, v{vH}\nv_lshlrev_b32 v{T + 2}, 11, v{vH}\nv_add_u32 v{T + 2}, {KS}, v{T + 2}')
                k(f'v_cndmask_b32 v{T + 1}, 17, v{T + 1}, vcc\nv_mul_u32_u24 v{T + 1}, 80, v{T + 1}\nv_add_u32 v{T + 1}, v{T + 1}, v{T + 2}')
                k(f'v_add_u32 v{T + 2}, {16 * 80}, v{T + 2}')
            ops.append(f3)
        if stage == 2:
            def f():
                k.wait(vm=self.tokKl)
                for j in range(3):
                    k(f'v_cvt_pk_bf16_f32 v{T + 4 + 4 * j}, v{T + 4 + 4 * j}, v{T + 5 + 4 * j}\nv_cvt_pk_bf16_f32 v{T + 5 + 4 * j}, v{T + 6 + 4 * j}, v{T + 7 + 4 * j}')
                    self.tokKw = k.ds(f'ds_write_b64 v{T}, {v(T + 4 + 4 * j, 2)} offset:{640 * j}')
            ops.append(f)
        if stage == 3:
            A1, ZR = T + 4, T + 36

            def f():
                k.wait(lg=self.tokKw)
                k('s_barrier')
            ops.append(f)
            for blk in range(2):
                for m in range(4):
                    ops.append(lambda blk=blk, m=m: k.ds(f'ds_read_b128 {v(A1 + 16 * blk + 4 * m, 4)}, v{T + 1} offset:{4096 * blk + 16 * m}'))
            for m in range(4):
                ops.append(lambda m=m: k.ds(f'ds_read_b128 {v(ZR + 4 * m, 4)}, v{T + 2} offset:{16 * m}'))
            for m in range(4):
                def g(m=m):
                    self.tokKr = k.ds(f'ds_read_b128 {v(ZR + 16 + 4 * m, 4)}, v{T + 2} offset:{4096 + 16 * m}')
                ops.append(g)
        if stage == 4:
            A1, ZR = T + 4, T + 36

            def f():
                k.wait(lg=self.tokKr)
                k(f'v_mov_b32 v{T}, {f32(1e-6)}\nv_mov_b32 v{T + 2}, {f32(1e-6)}')
                for i in range(16):
                    k(f'v_dot2c_f32_bf16 v{T}, v{ZR + i}, v{vPhi + i}\nv_dot2c_f32_bf16 v{T + 2}, v{ZR + 16 + i}, v{vPhi + 16 + i}')
                for blk in range(2):
                    for m in range(4):
                        k(f'v_mfma_f32_32x32x16_bf16 {v(ZR + 16 * blk, 16)}, {v(A1 + 16 * blk + 4 * m, 4)}, {v(vPhi + 16 * blk + 4 * m, 4)}, {"0" if m == 0 else v(ZR + 16 * blk, 16)}')
                k(f'v_rcp_f32 v{T}, v{T}\nv_rcp_f32 v{T + 2}, v{T + 2}')
            ops.append(f)
        if stage == 5:
            A1, ZR = T + 4, T + 36
            for i in range(32):
                ops.append(lambda i=i: k(f'v_mul_f32 v{ZR + i}, v{ZR + i}, v{T + 2 * (i >> 4)}'))
                if i & 1:
                    ops.append(lambda i=i: k(f'v_cvt_pk_bf16_f32 v{A1 + (i >> 1)}, v{ZR + i - 1}, v{ZR + i}'))

            def f():
                k(f's_lshl_b32 s{sT0}, s{sTg}, 15\ns_lshl_b32 s{sT1}, s{sA}, 12\ns_add_u32 s{sT0}, s{sT0}, s{sT1}\ns_add_u32 s{sT0}, s{sT0}, {WS_O}')
                k(f'v_lshlrev_b32 v{T + 1}, 4, v{L}')
                for j in range(4):
                    self.tokO = k.vm(f'buffer_store_dwordx4 {v(A1 + 4 * j, 4)}, v{T + 1}, {s(sW, 4)}, s{sT0} offen offset:{1024 * j} sc1')
                k(f's_lshl_b32 s{sKf}, s{sTg}, 5\ns_lshl_b32 s{sT1}, s{sA}, 2\ns_add_u32 s{sKf}, s{sKf}, s{sT1}\ns_add_u32 s{sKf}, s{sKf}, {WS_FO}')
            ops.append(f)
        if stage == 6:
            def f():
                k.wait(vm=self.tokO)
                self.flag_store(sKf)
            ops.append(f)
        return ops

    def z1_ops(self, stage):
        k = self.k
        L = vLane
        ops = []
        if stage == 0:
            def f():
                k(f'v_min_u32 v2, 2, v{L}\nv_lshlrev_b32 v2, 1, v2\nv_add_u32 v2, s{sFg}, v2\nv_max_i32 v2, 0, v2\nv_lshrrev_b32 v2, 3, v2\nv_min_u32 v2, 5, v2')
                k(f'v_lshlrev_b32 v{vY}, 8, v2\ns_lshl_b32 s{sYf}, s{sTg2}, 2\ns_add_u32 s{sYf}, s{sYf}, {WS_FY}')
                self.tokYf = k.vm(f'buffer_load_dword v{vY + 1}, v{vY}, {s(sW, 4)}, s{sYf} offen sc1')
            ops.append(f)
        if stage == 1:
            def f():
                self.chk(self.tokYf, vY + 1, vY, sYf, 7)
                k(f's_mul_i32 s{sT1}, s{sTg2}, 44\ns_add_u32 s{sT1}, s{sT1}, s{sFg}\ns_lshl_b32 s{sHb}, s{sT1}, 10')
                k(f'v_lshlrev_b32 v{vL16}, 4, v{L}')
                for b in range(3):
                    k(f's_add_u32 s{sT1}, s{sHb}, {WS_Z1 + 2048 * b}')
                    self.tokZ1 = k.vm(f'buffer_load_dwordx4 {v(vZ1 + 4 * b, 4)}, v{vL16}, {s(sW, 4)}, s{sT1} offen sc1')
            ops.append(f)
        return ops

    def p2(self, typ):
        k = self.k
        tokw = {}

        def wread(n, j):
            p, ks = n >> 2, n & 3
            pi = 2 * p + j
            if pi < 7:
                return
            k.wait(vm=self.tokS[pi])
            slot = self.sp_slot(pi)
            if slot < 8:
                tokw[n] = k.ds(f'ds_read_b128 {v(wl + 8 * (n & 1) + 4 * j, 4)}, v{vXR + ks} offset:{4096 * slot}')
            else:
                tokw[n] = k.ds(f'ds_read_b128 {v(wl + 8 * (n & 1) + 4 * j, 4)}, v{vXE + ks}')

        def wop(n, j):
            p, ks = n >> 2, n & 3
            pi = 2 * p + j
            return a(aW + 16 * pi + 4 * ks, 4) if pi < 7 else v(wl + 8 * (n & 1) + 4 * j, 4)

        sched = {}
        sched.setdefault(PUB_AT, []).append(lambda: (k.wait(vm=self.tokPub), self.flag_store(sPubF)))
        if typ == 'Y':
            for st, n in enumerate(O_AT):
                sched.setdefault(n, []).extend(self.o_step(st))
        for st, n in enumerate(Z1_AT):
            sched.setdefault(n, []).extend(self.z1_ops(st))
        self.stamp()
        for n in range(32):
            fill = []
            if n + ZD - 1 < 32:
                fill += self.zload_ops(n + ZD - 1)
            if n + 1 < 32:
                fill += [lambda: wread(n + 1, 0), lambda: wread(n + 1, 1)]
            fill += sched.get(n, [])
            k.wait(vm=self.tokZ[n], lg=tokw.get(n))
            main = []
            for b in range(3):
                for j in range(2):
                    acc = a(32 * b + 16 * j, 16)
                    main.append(lambda b=b, j=j, acc=acc: k(
                        f'v_mfma_f32_32x32x16_bf16 {acc}, {v(zb + 12 * (n % ZD) + 4 * b, 4)}, {wop(n, j)}, {"0" if n == 0 else acc}'))
            weave(k, main, fill)
        for n in range(32, 40):
            for op in sched.get(n, []):
                op()
        self.stamp()

    def dmaU(self, srd, srow, ldsbase_expr):
        k = self.k
        for half in range(2):
            ldsbase_expr(4096 * half)
            if half:
                k(f's_add_u32 s{srow}, s{srow}, 32768')
            else:
                k.nop(1)
            for j in range(4):
                t = k.vm(f'buffer_load_dwordx4 v{vU + j}, {s(srd, 4)}, s{srow} offen offset:{1024 * j} lds')
        return t

    def p3(self):
        k = self.k
        L = vLane
        k(f'v_lshrrev_b32 v2, 3, v{L}\nv_bfe_u32 v3, v{L}, 4, 1\nv_lshlrev_b32 v3, 2, v3\nv_and_b32 v4, 7, v{L}\nv_xor_b32 v3, v3, v4\nv_lshlrev_b32 v3, 4, v3')
        k(f'v_lshl_add_u32 v{vU}, v2, 10, v3')
        for j in range(1, 4):
            k(f'v_add_u32 v{vU + j}, {7168 * j}, v{vU}')
        k(f's_lshr_b32 s{sKh}, s{sWave}, 1\ns_and_b32 s{sTb}, s{sWave}, 1\ns_lshl_b32 s{sNc}, s{sN2}, 7')
        k(f's_lshl_b32 s{sT1}, s{sKh}, 18\ns_lshl_b32 s{sT2}, s{sTb}, 16\ns_add_u32 s{sT1}, s{sT1}, s{sT2}\ns_add_u32 s{sT1}, s{sT1}, s{sNc}')
        k(f's_add_u32 s{sT3}, s{sT1}, {128 * 1024}')
        self.dmaU(sWO, sT1, lambda o: k(f's_add_u32 m0, s{sRw}, {24576 + o}'))
        k(f'v_add_u32 v2, s{sRw}, v{vL16}')
        for d in (1, 2, 3):
            j, hi = d & 1, (d >> 1) * 8
            for b in range(3):
                for q in range(2):
                    k.ds(f'ds_write_b128 v2, {a(32 * b + 16 * j + hi + 4 * q, 4)} offset:{(d - 1) * 6144 + b * 2048 + q * 1024}')
        G = 64
        for b in range(3):
            for i in range(8):
                k(f'v_accvgpr_read_b32 v{G + 8 * b + i}, a{32 * b + i}')
        for d in (1, 2, 3):
            k(f'v_xor_b32 v{2 + d}, {32768 * d}, v2')
        k(f'v_lshlrev_b32 v{vBs}, 16, v{vBs}')
        k(f'v_and_b32 v{vY}, 3, v{L}\nv_lshlrev_b32 v{vY}, 2, v{vY}\ns_lshl_b32 s{sYf}, s{sTg2}, 5\ns_lshl_b32 s{sT2}, s{sKh}, 4')
        k(f's_add_u32 s{sYf}, s{sYf}, s{sT2}\ns_add_u32 s{sYf}, s{sYf}, {WS_FO}')
        k.wait(lg=k.lgn)
        k('s_barrier')
        RD = 96
        tk = {}
        for b in range(3):
            for d in (1, 2, 3):
                for q in range(2):
                    tk[b] = k.ds(f'ds_read_b128 {v(RD + 24 * b + 8 * (d - 1) + 4 * q, 4)}, v{2 + d} offset:{(d - 1) * 6144 + b * 2048 + q * 1024}')
        tokFo = k.vm(f'buffer_load_dword v{vY + 1}, v{vY}, {s(sW, 4)}, s{sYf} offen sc1')
        k.wait(vm=self.tokZ1)
        ZF = 176
        for b in range(3):
            for i in range(4):
                k(f'v_lshlrev_b32 v{ZF + 8 * b + 2 * i}, 16, v{vZ1 + 4 * b + i}\nv_and_b32 v{ZF + 8 * b + 2 * i + 1}, 0xffff0000, v{vZ1 + 4 * b + i}')
            for i in range(0, 8, 2):
                k(f'v_pk_add_f32 {v(G + 8 * b + i, 2)}, {v(G + 8 * b + i, 2)}, {v(vBs, 2)} op_sel_hi:[1,0]')
        for b in range(3):
            k.wait(lg=tk[b])
            for i in range(0, 8, 2):
                k(f'v_pk_add_f32 {v(RD + 24 * b + i, 2)}, {v(RD + 24 * b + i, 2)}, {v(RD + 24 * b + 8 + i, 2)}')
                k(f'v_pk_add_f32 {v(G + 8 * b + i, 2)}, {v(G + 8 * b + i, 2)}, {v(RD + 24 * b + 16 + i, 2)}')
            for i in range(0, 8, 2):
                k(f'v_pk_add_f32 {v(G + 8 * b + i, 2)}, {v(G + 8 * b + i, 2)}, {v(RD + 24 * b + i, 2)}')
            for i in range(0, 8, 2):
                k(f'v_pk_mul_f32 {v(G + 8 * b + i, 2)}, {v(G + 8 * b + i, 2)}, {v(ZF + 8 * b + i, 2)}')
            for i in range(4):
                k(f'v_cvt_pk_bf16_f32 v{ZF + 8 * b + i}, v{G + 8 * b + 2 * i}, v{G + 8 * b + 2 * i + 1}')
            k(f's_add_u32 s{sT1}, s{sFg}, {2 * b}\ns_add_u32 s{sT2}, s{sHb}, {WS_H + 2048 * b}\ns_cmp_le_u32 s{sT1}, 42\ns_cselect_b32 s{sT2}, s{sT2}, {BIG}')
            tokH = k.vm(f'buffer_store_dwordx4 {v(ZF + 8 * b, 4)}, v{vL16}, {s(sW, 4)}, s{sT2} offen sc1')
        self.stamp()
        k('s_barrier')
        k(f's_lshl_b32 s{sT4}, s{sWave}, 13\ns_add_u32 s{sT4}, s{sT4}, {EX}')
        tU2 = self.dmaU(sWO, sT3, lambda o: k(f's_add_u32 m0, s{sT4}, {o}'))
        self.chk(tokFo, vY + 1, vY, sYf, 15)
        OB = 64
        k(f's_lshl_b32 s{sT1}, s{sTg2}, 15\ns_lshl_b32 s{sT2}, s{sKh}, 14\ns_add_u32 s{sT1}, s{sT1}, s{sT2}\ns_add_u32 s{sT1}, s{sT1}, {WS_O}')
        tO = []
        for n in range(16):
            if n and n % 4 == 0:
                k(f's_add_u32 s{sT1}, s{sT1}, 4096')
            tO.append(k.vm(f'buffer_load_dwordx4 {v(OB + 4 * n, 4)}, v{vL16}, {s(sW, 4)}, s{sT1} offen offset:{1024 * (n & 3)} sc1'))
        k(f's_mul_i32 s{sT1}, s{sKh}, {352 * 1024}\ns_mul_i32 s{sT2}, s{sTb}, {192 * 1024}\ns_add_u32 s{sT1}, s{sT1}, s{sT2}\ns_add_u32 s{sT1}, s{sT1}, s{sNc}')
        for u in range(3):
            if u:
                k(f's_add_u32 s{sT1}, s{sT1}, 32768')
            tWU = self.dmaU(sWU, sT1, lambda o, u=u: k(f's_add_u32 m0, s{sRw}, {8192 * u + o}'))
        XR = 248
        k(f'v_and_b32 v2, 31, v{L}\nv_lshlrev_b32 v2, 10, v2\nv_lshl_add_u32 v{vOut}, v{vH}, 3, v2')
        k(f's_lshl_b32 s{sOb}, s{sTg2}, 15\ns_add_u32 s{sOb}, s{sOb}, s{sNc}\ns_lshl_b32 s{sT2}, s{sKh}, 6\ns_add_u32 s{sOb}, s{sOb}, s{sT2}')
        for aa in range(4):
            tX = k.vm(f'buffer_load_dwordx2 {v(XR + 2 * aa, 2)}, v{vOut}, {s(sX, 4)}, s{sOb} offen offset:{16 * aa}')
        k(f'v_bfe_u32 v2, v{L}, 2, 2\nv_lshlrev_b32 v2, 7, v2\nv_bfe_u32 v3, v{L}, 3, 1\nv_xor_b32 v3, s{sKh}, v3\nv_lshl_add_u32 v2, v3, 6, v2')
        k(f'v_bfe_u32 v3, v{L}, 4, 1\nv_lshl_add_u32 v2, v3, 5, v2\nv_and_b32 v3, 3, v{L}\nv_lshl_add_u32 v2, v3, 3, v2')
        k(f's_lshl_b32 s{sT2}, s{sKh}, 16\ns_lshl_b32 s{sT4}, s{sKh}, 14\ns_add_u32 s{sT4}, s{sT4}, {EX}')
        k(f'v_lshl_add_u32 v3, v{vH}, 9, v2\nv_add_u32 v{vTU}, s{sT2}, v3\nv_xor_b32 v{vTU + 1}, 64, v{vTU}')
        k(f'v_lshl_add_u32 v3, v{vH}, 11, v2\nv_add_u32 v{vTO}, s{sT2}, v3\nv_xor_b32 v{vTO + 1}, 64, v{vTO}')
        k(f'v_add_u32 v{vTO + 2}, s{sT4}, v3\nv_xor_b32 v{vTO + 3}, 64, v{vTO + 2}')
        k(f's_lshl_b32 s{sT1}, s{sM2}, 7\ns_lshl_b32 s{sT2}, s{sN2}, 4\ns_add_u32 s{sT2}, s{sT2}, s{sT1}\ns_lshl_b32 s{sT4}, s{sWave}, 2')
        k(f's_add_u32 s{sT2}, s{sT2}, s{sT4}\ns_add_u32 s{sT2}, s{sT2}, {WS_FH}')
        k(f's_lshl_b32 s{sT4}, s{sTb}, 2\ns_add_u32 s{sYf}, s{sT1}, s{sT4}\ns_add_u32 s{sYf}, s{sYf}, {WS_FH}')
        k(f'v_and_b32 v{vY}, 15, v{L}\nv_lshlrev_b32 v{vY}, 3, v{vY}')
        k.wait(vm=tokH)
        self.flag_store(sT2)
        self.stamp()
        k.wait(vm=tU2)
        k('s_barrier')
        RG, AS, AB = 152, 184, 216
        LA = 5
        tokf = {}

        def gemm(nk, rdaddr, bop, btok, acc, extra={}):
            frs = [(n, j) for n in range(nk) for j in range(2)]

            def rd(x):
                n, j = frs[x]
                for t in range(2):
                    vb, off = rdaddr(n, j, t)
                    tokf[x] = k.ds(f'ds_read_b64_tr_b16 {v(RG + 4 * (x & 7) + 2 * t, 2)}, v{vb} offset:{off}')
            for x in range(LA):
                rd(x)
            for x, (n, j) in enumerate(frs):
                k.wait(vm=btok[n], lg=tokf[x])
                k(f'v_mfma_f32_32x32x16_bf16 {v(acc + 16 * j, 16)}, {v(RG + 4 * (x & 7), 4)}, {bop(n)}, {"0" if n == 0 else v(acc + 16 * j, 16)}')
                if x + LA < len(frs):
                    rd(x + LA)
                if x in extra:
                    extra[x]()

        def rdo(n, j, t):
            ul, kap = n >> 1, n & 1
            idx = ul >> 1
            inrow = 32 * (ul & 1) + 8 * kap + 4 * t
            if idx < 2:
                return vTO + j, idx * 32768 + 24576 + inrow * 128
            return vTO + 2 + j, (idx - 2) * 8192 + inrow * 128
        st = {}

        def fh_load():
            st['t'] = k.vm(f'buffer_load_dword v{vY + 1}, v{vY}, {s(sW, 4)}, s{sYf} offen sc1')
        gemm(16, rdo, lambda n: v(OB + 4 * n, 4), tO, AS, {22: fh_load})
        self.stamp()
        k.wait(vm=tWU)
        k('s_barrier')
        self.chk(st['t'], vY + 1, vY, sYf, 0xffff)
        HB = 64
        k(f's_mul_i32 s{sT1}, s{sTg2}, {44 * 1024}\ns_mul_i32 s{sT2}, s{sKh}, {22 * 1024}\ns_add_u32 s{sT1}, s{sT1}, s{sT2}\ns_add_u32 s{sT1}, s{sT1}, {WS_H}')
        tHl = []
        for n in range(22):
            if n and n % 4 == 0:
                k(f's_add_u32 s{sT1}, s{sT1}, 4096')
            if n == 21:
                k(f's_cmp_eq_u32 s{sKh}, 1\ns_cselect_b32 s{sT1}, {BIG}, s{sT1}')
            tHl.append(k.vm(f'buffer_load_dwordx4 {v(HB + 4 * n, 4)}, v{vL16}, {s(sW, 4)}, s{sT1} offen offset:{1024 * (n & 3)} sc1'))
        self.stamp()
        k(f'v_add_u32 v2, s{sRw}, v{vL16}\nv_xor_b32 v3, 0x10000, v2')
        for q in range(4):
            k.ds(f'ds_write_b128 v2, {v(AS + 16 + 4 * q, 4)} offset:{24576 + 1024 * q}')

        def rdu(n, j, t):
            uu = n >> 2
            return vTU + j, (uu // 3) * 32768 + (uu % 3) * 8192 + (n & 3) * 2048 + t * 1024
        gemm(22, rdu, lambda n: v(HB + 4 * n, 4), tHl, AB)
        XF = 64
        for aa in range(4):
            for i in range(2):
                k(f'v_lshlrev_b32 v{XF + 4 * aa + 2 * i}, 16, v{XR + 2 * aa + i}\nv_and_b32 v{XF + 4 * aa + 2 * i + 1}, 0xffff0000, v{XR + 2 * aa + i}')
        for q in range(4):
            k.ds(f'ds_write_b128 v2, {v(AB + 16 + 4 * q, 4)} offset:{28672 + 1024 * q}')
        k.wait(lg=k.lgn)
        k('s_barrier')
        for q in range(4):
            tb_ = k.ds(f'ds_read_b128 {v(AB + 16 + 4 * q, 4)}, v3 offset:{28672 + 1024 * q}')
        for q in range(4):
            ts_ = k.ds(f'ds_read_b128 {v(AS + 16 + 4 * q, 4)}, v3 offset:{24576 + 1024 * q}')
        k(f's_mov_b32 s{sT0}, {f32(-math.log2(math.e))}')
        k.wait(lg=tb_)
        E = 96
        for i in range(0, 16, 2):
            k(f'v_pk_add_f32 {v(AB + i, 2)}, {v(AB + i, 2)}, {v(AB + 16 + i, 2)}')
        for i in range(0, 16, 2):
            k(f'v_pk_mul_f32 {v(E + i, 2)}, {v(AB + i, 2)}, {s(sT0, 2)} op_sel_hi:[1,0]')
        for i in range(16):
            k(f'v_exp_f32 v{E + i}, v{E + i}')
        k.wait(lg=ts_)
        for i in range(0, 16, 2):
            k(f'v_pk_add_f32 {v(AS + i, 2)}, {v(AS + i, 2)}, {v(AS + 16 + i, 2)}')
        for i in range(0, 16, 2):
            k(f'v_pk_add_f32 {v(E + i, 2)}, {v(E + i, 2)}, 1.0 op_sel_hi:[1,0]')
        for i in range(16):
            k(f'v_rcp_f32 v{E + i}, v{E + i}')
        for i in range(0, 16, 2):
            k(f'v_pk_mul_f32 {v(AS + i, 2)}, {v(AS + i, 2)}, {v(AB + i, 2)}')
        for i in range(0, 16, 2):
            k(f'v_pk_fma_f32 {v(XF + i, 2)}, {v(AS + i, 2)}, {v(E + i, 2)}, {v(XF + i, 2)}')
        P = 112
        for i in range(8):
            k(f'v_cvt_pk_bf16_f32 v{P + i}, v{XF + 2 * i}, v{XF + 2 * i + 1}')
        k(f'v_lshl_add_u32 v{vOut}, v{vH}, 3, v{vOut}')
        k.nop(1)
        for g in range(2):
            k(f'v_permlane32_swap_b32 v{P + 4 * g}, v{P + 4 * g + 2}\nv_permlane32_swap_b32 v{P + 4 * g + 1}, v{P + 4 * g + 3}')
        for g in range(2):
            k.vm(f'buffer_store_dwordx4 {v(P + 4 * g, 4)}, v{vOut}, {s(sO, 4)}, s{sOb} offen offset:{32 * g}')
        le = k.label('Lep')
        lp = k.label('Lpp')
        k(f's_or_b32 s{sT0}, s2, s{sWave}\ns_cmp_eq_u32 s{sT0}, 0\ns_cbranch_scc0 {le}')
        k(f's_mov_b32 s{sCnt}, 0\ns_mov_b32 s{sT1}, {WS_FH}\nv_lshlrev_b32 v2, 6, v{L}\n{lp}:')
        for j in range(4):
            k(f'buffer_load_dword v{4 + j}, v2, {s(sW, 4)}, s{sT1} offen offset:{16 * j} sc1')
        k(f's_add_u32 s{sCnt}, s{sCnt}, 1\ns_waitcnt vmcnt(0)')
        k(f'v_xor_b32 v4, s{sTag}, v4\nv_xor_b32 v5, s{sTag}, v5\nv_xor_b32 v6, s{sTag}, v6\nv_xor_b32 v7, s{sTag}, v7')
        k(f'v_or_b32 v4, v4, v5\nv_or3_b32 v4, v4, v6, v7\nv_cmp_ne_u32 vcc, 0, v4\ns_cmp_gt_u32 s{sCnt}, {SPIN}\ns_cbranch_scc1 {le}')
        k(f's_and_b64 vcc, vcc, exec\ns_cbranch_scc1 {lp}')
        k(f's_mov_b32 s{sT1}, 0')
        self.flag_store(sT1)
        k(f'{le}:')
        if self.ts:
            k.wait_vm0()
            self.stamp()
            self.dump_ts()
        k('s_endpgm')

    def dump_ts(self):
        k = self.k
        n = self.nts
        k(f's_lshl_b32 s{sT0}, s2, 2\ns_add_u32 s{sT0}, s{sT0}, s{sWave}\ns_lshl_b32 s{sT0}, s{sT0}, 6\ns_add_u32 s{sT0}, s{sT0}, {WS_DBG}')
        k(f's_mov_b32 s{sW + 2}, 0x10000000')
        for i in range(n):
            k(f'v_mov_b32 v4, s{sTS + i}')
            k(f'buffer_store_dword v4, v{vL0}, {s(sW, 4)}, s{sT0} offen offset:{4 * i}')
        k.wait_vm0()

    def build(self):
        k = self.k
        self.setup()
        self.passA()
        if self.stop == 'passA':
            k.nop(4)
            self.dump([('v', accA + i) for i in range(32)] + [('v', r) for r in (vSum, vSq, vC0, vC1)] + [('a', i) for i in range(128)])
        elif self.epiA() or self.passB() or self.epiB_common():
            pass
        else:
            ly = k.label('LY')
            k(f's_cmp_eq_u32 s{sIsX}, 0\ns_cbranch_scc1 {ly}')
            st = (k.vmn, k.vmdone, k.lgn, k.lgdone, dict(self.tokS))
            lj = k.label('LJ')
            nts0 = self.nts
            for typ in 'XY':
                if typ == 'Y':
                    k(f'{ly}:')
                    k.vmn, k.vmdone, k.lgn, k.lgdone, self.tokS = st[0], st[1], st[2], st[3], dict(st[4])
                (self.epiX if typ == 'X' else self.epiY)()
                if self.stop == 'p1':
                    k.wait_vm0()
                    self.flag_store(sPubF)
                    self.dump([('a', aW + i) for i in range(112)])
                    continue
                self.p2(typ)
                if typ == 'X':
                    k(f's_branch {lj}')
                    stX = (k.vmn - k.vmdone, k.vmn - self.tokZ1, self.nts)
                    self.nts = nts0
            if self.stop != 'p1':
                k(f'{lj}:')
                assert k.vmn - self.tokZ1 >= stX[1]
                self.tokZ1 = k.vmn - stX[1]
                k.vmdone = min(k.vmdone, k.vmn - stX[0])
                k.wait_lg0()
                self.p3()
                self.emit_tail()
        k('L_end:\ns_endpgm')
        body = k.text()
        hdr = open('recurrent_scan__linear_kernel_hedgehog__mixer_gmlp__prompt.s.ref').read().split('; Override launch')[0]
        txt = hdr + '; @launch grid=(256,1,1) block=(256,1,1) lds=163840\n.amdgcn_target "amdgcn-amd-amdhsa--gfx950"\n.text\n'
        txt += f'.globl {KNAME}\n.p2align 8\n.type {KNAME},@function\n{KNAME}:\n' + body
        txt += f'''.section .rodata,"a"
.p2align 6
.amdhsa_kernel {KNAME}
  .amdhsa_next_free_vgpr 512
  .amdhsa_next_free_sgpr 102
  .amdhsa_accum_offset 256
  .amdhsa_group_segment_fixed_size 0
  .amdhsa_kernarg_size 96
  .amdhsa_user_sgpr_count 2
  .amdhsa_user_sgpr_kernarg_segment_ptr 1
  .amdhsa_system_sgpr_workgroup_id_x 1
.end_amdhsa_kernel
'''
        errs = check_hazards(k.ins)
        return txt, errs


if __name__ == '__main__':
    import argparse
    ap = argparse.ArgumentParser()
    ap.add_argument('-o', default='k.s')
    ap.add_argument('--stop', default=None)
    ap.add_argument('--ts', action='store_true')
    args = ap.parse_args()
    g = Gen(stop=args.stop, ts=args.ts)
    txt, errs = g.build()
    open(args.o, 'w').write(txt)
```
